```python
import torch

def _softmax(x, axis=-1):
    return torch.softmax(x, dim=axis)
def _gelu(x):
    return torch.nn.functional.gelu(x, approximate="tanh")
def _silu(x):
    return torch.nn.functional.silu(x)
def _sigmoid(x):
    return torch.sigmoid(x)
def _layernorm(x, axis=-1, eps=1e-5):
    m = x.mean(dim=axis, keepdim=True)
    v = x.var(dim=axis, keepdim=True, unbiased=False)
    return (x - m) / torch.sqrt(v + eps)
def _scatter_add(tgt, idx, src, axis=0):
    return tgt.clone().index_add_(axis, idx, src)
def _segment_sum(src, seg, n):
    out = torch.zeros((n,) + src.shape[1:], dtype=src.dtype)
    return out.index_add_(0, seg, src)
def _pad(x, pw):
    flat = tuple(v for pair in reversed(pw) for v in pair)
    return torch.nn.functional.pad(x, flat)

kernel_name = 'standalone__mixer_token_mlp__prompt'

def setup_inputs():

    _w = (lambda a: (lambda t: t.to(torch.bfloat16) if t.is_floating_point() else t)(torch.as_tensor(a)))
    B, S, D, F = 1, 2048, 512, 1376
    return {
        "x": _w((lambda *s: torch.randn(*s, dtype=torch.bfloat16) * 0.05)(B, S, D)),
        "w1": _w((lambda *s: torch.randn(*s, dtype=torch.bfloat16) * 0.2)(S, F) * (S ** -0.5)),
        "b1": _w((lambda *s: torch.randn(*s, dtype=torch.bfloat16) * 1.6)(F) * 0.02),
        "w2": _w((lambda *s: torch.randn(*s, dtype=torch.bfloat16) * 0.05)(F, S) * (F ** -0.5)),
        "b2": _w((lambda *s: torch.randn(*s, dtype=torch.bfloat16) * 0.1)(S) * 0.02),
    }

def reference(x, w1, b1, w2, b2):
    B, S, D = x.shape
    h = _layernorm(x, axis=-1)
    u = torch.einsum("bsd,sf->bdf", h, w1) + b1
    u = _gelu(u)
    y = torch.einsum("bdf,fs->bds", u, w2) + b2
    return (lambda x, *d: x.permute(*d))(y, 0, 2, 1)
```

```python
import sys, math, struct

S, D, F = 2048, 512, 1376
W1P, W2P = F * 2, S * 2
X_BYTES, W1_BYTES, W2_BYTES = S * D * 2, S * F * 2, F * S * 2
H_OFF, H_BYTES = 0, S * D * 2
U_OFF, U_BYTES = 2 << 20, 43 * 32 * 1024

def f32(x): return "0x%08x" % struct.unpack("<I", struct.pack("<f", x))[0]

class Asm:
    def __init__(self): self.l = []
    def __call__(self, s):
        for line in s.strip("\n").split("\n"):
            self.l.append("    " + line.strip() if not line.strip().endswith(":") else line.strip())
    def text(self): return "\n".join(self.l) + "\n"

def srd(a, d, b, nbytes, off=0):
    if off:
        a(f"s_add_u32 s{d}, s{b}, {off}\ns_addc_u32 s{d+1}, s{b+1}, 0")
    else:
        a(f"s_mov_b32 s{d}, s{b}\ns_mov_b32 s{d+1}, s{b+1}")
    a(f"s_mov_b32 s{d+2}, {nbytes}\ns_mov_b32 s{d+3}, 0x20000")

def head(a, name):
    a.l.append(f".globl {name}\n.p2align 8\n.type {name},@function\n{name}:")

def desc(name, vgpr, sgpr=96, accum=None):
    accum = accum or ((vgpr + 3) // 4 * 4)
    return f""".section .rodata,"a"
.p2align 6
.amdhsa_kernel {name}
  .amdhsa_next_free_vgpr {vgpr}
  .amdhsa_next_free_sgpr {sgpr}
  .amdhsa_accum_offset {accum}
  .amdhsa_group_segment_fixed_size 0
  .amdhsa_kernarg_size 64
  .amdhsa_user_sgpr_count 2
  .amdhsa_user_sgpr_kernarg_segment_ptr 1
  .amdhsa_system_sgpr_workgroup_id_x 1
.end_amdhsa_kernel
"""

def wave_allreduce(a, regs, tmps):
    for ctrl in ("quad_perm:[1,0,3,2]", "quad_perm:[2,3,0,1]", "row_half_mirror", "row_mirror"):
        a("s_nop 1")
        for r in regs:
            a(f"v_add_f32_dpp v{r}, v{r}, v{r} {ctrl} row_mask:0xf bank_mask:0xf")
    for op in ("v_permlane16_swap_b32", "v_permlane32_swap_b32"):
        for r, t in zip(regs, tmps):
            a(f"v_mov_b32 v{t}, v{r}")
        a("s_nop 1")
        for r, t in zip(regs, tmps):
            a(f"{op} v{r}, v{t}")
        a("s_nop 1")
        for r, t in zip(regs, tmps):
            a(f"v_add_f32 v{r}, v{r}, v{t}")

def round_bf16(a, r):
    a(f"v_cvt_pk_bf16_f32 v{r}, v{r}, v{r}\nv_and_b32 v{r}, 0xffff0000, v{r}")

def ln_kernel(a):
    head(a, "ln_kernel")
    a("s_cmp_ge_u32 s2, 256\ns_cbranch_scc1 LN_end")
    a("s_load_dwordx2 s[4:5], s[0:1], 0\ns_load_dwordx2 s[6:7], s[0:1], 56")
    a("v_and_b32 v1, 63, v0\nv_lshrrev_b32 v2, 6, v0")
    a("v_lshlrev_b32 v3, 11, v2\nv_lshl_add_u32 v3, v1, 4, v3")
    a("s_lshl_b32 s3, s2, 13")
    a("s_waitcnt lgkmcnt(0)")
    srd(a, 8, 4, X_BYTES); srd(a, 12, 6, H_BYTES, H_OFF)
    a("buffer_load_dwordx4 v[8:11], v3, s[8:11], s3 offen")
    a("buffer_load_dwordx4 v[12:15], v3, s[8:11], s3 offen offset:1024")
    P = 1056
    a(f"v_mul_u32_u24 v4, {2*P}, v2\nv_lshl_add_u32 v4, v1, 4, v4")
    a("v_lshrrev_b32 v5, 4, v1\nv_bfe_u32 v6, v1, 2, 2\nv_and_b32 v7, 3, v1")
    a(f"v_mul_u32_u24 v6, {P}, v6")
    a("v_lshl_add_u32 v48, v2, 3, v5")
    a("v_lshl_add_u32 v6, v48, 5, v6\nv_lshl_add_u32 v6, v7, 3, v6")
    a("v_and_b32 v7, 15, v1\nv_lshlrev_b32 v7, 4, v7\nv_lshl_add_u32 v7, v48, 10, v7")
    a("s_lshr_b32 s16, s2, 2\ns_lshl_b32 s16, s16, 15\ns_and_b32 s17, s2, 3\ns_lshl_b32 s17, s17, 8\ns_add_u32 s16, s16, s17")
    a("s_waitcnt vmcnt(0)")
    for row in range(2):
        for i in range(4):
            src = 8 + 4 * row + i; dst = 16 + 8 * row + 2 * i
            a(f"v_lshlrev_b32 v{dst}, 16, v{src}\nv_and_b32 v{dst+1}, 0xffff0000, v{src}")
    for row in range(2):
        b = 16 + 8 * row; s = 32 + row
        a(f"v_add_f32 v{s}, v{b}, v{b+1}")
        for i in range(2, 8): a(f"v_add_f32 v{s}, v{s}, v{b+i}")
    wave_allreduce(a, [32, 33], [34, 35])
    for row in range(2): a(f"v_mul_f32 v{32+row}, {f32(1.0/D)}, v{32+row}")
    for row in range(2):
        b = 16 + 8 * row; s = 36 + row
        for i in range(8):
            a(f"v_sub_f32 v{40+row}, v{b+i}, v{32+row}")
            a(f"v_mul_f32 v{s}, v{40+row}, v{40+row}" if i == 0 else f"v_fmac_f32 v{s}, v{40+row}, v{40+row}")
    wave_allreduce(a, [36, 37], [34, 35])
    for row in range(2):
        s = 36 + row
        a(f"v_mul_f32 v{s}, {f32(1.0/D)}, v{s}"); round_bf16(a, s)
        a(f"v_add_f32 v{s}, {f32(1e-5)}, v{s}"); round_bf16(a, s)
        a(f"v_sqrt_f32 v{s}, v{s}\ns_nop 0"); round_bf16(a, s)
        a(f"v_rcp_f32 v{s}, v{s}")
        round_bf16(a, 32 + row)
    for row in range(2):
        b = 16 + 8 * row
        for i in range(4):
            x0, x1 = b + 2 * i, b + 2 * i + 1
            a(f"v_sub_f32 v{x0}, v{x0}, v{32+row}\nv_sub_f32 v{x1}, v{x1}, v{32+row}")
            a(f"v_cvt_pk_bf16_f32 v{x1}, v{x0}, v{x1}")
            a(f"v_lshlrev_b32 v{x0}, 16, v{x1}\nv_and_b32 v{x1}, 0xffff0000, v{x1}")
            a(f"v_mul_f32 v{x0}, v{x0}, v{36+row}\nv_mul_f32 v{x1}, v{x1}, v{36+row}")
            a(f"v_cvt_pk_bf16_f32 v{8+4*row+i}, v{x0}, v{x1}")
    a(f"ds_write_b128 v4, v[8:11]\nds_write_b128 v4, v[12:15] offset:{P}")
    a("s_waitcnt lgkmcnt(0)\ns_barrier")
    for it in range(2):
        for j in range(2):
            a(f"ds_read_b64_tr_b16 v[{16+4*it+2*j}:{17+4*it+2*j}], v6 offset:{j*4*P + it*128}")
    a("s_waitcnt lgkmcnt(0)")
    a("s_add_u32 s17, s16, 4096")
    a("buffer_store_dwordx4 v[16:19], v7, s[12:15], s16 offen")
    a("buffer_store_dwordx4 v[20:23], v7, s[12:15], s17 offen")
    a("LN_end:\ns_endpgm")

def gemm_kernel(a, which, DEPTH=3):
    g1 = which == 1
    name = "gemm1_kernel" if g1 else "gemm2_kernel"
    L = "G1" if g1 else "G2"
    NA = 3 if g1 else 4
    NST = 16 if g1 else 11
    WP = W1P if g1 else W2P
    NWG = 242 if g1 else 256
    R = DEPTH + 1
    RED = 4 * R * 4096
    head(a, name)
    a(f"s_cmp_ge_u32 s2, {NWG}\ns_cbranch_scc1 {L}_end")
    a(f"s_load_dwordx2 s[4:5], s[0:1], {8 if g1 else 24}")
    a(f"s_load_dwordx2 s[6:7], s[0:1], {16 if g1 else 32}")
    a("s_load_dwordx2 s[8:9], s[0:1], 56")
    a("s_load_dwordx2 s[10:11], s[0:1], 40")
    if g1:
        a("s_mul_i32 s40, s2, 5958\ns_lshr_b32 s40, s40, 16")
        a("s_mul_i32 s41, s40, 11\ns_sub_u32 s41, s2, s41")
    else:
        a("s_lshr_b32 s40, s2, 3\ns_and_b32 s41, s2, 7")
    a("v_and_b32 v1, 63, v0\nv_lshrrev_b32 v2, 6, v0\ns_nop 0\nv_readfirstlane_b32 s42, v2")
    a("v_lshrrev_b32 v3, 3, v1")
    a("v_and_b32 v8, 7, v1\nv_bfe_u32 v9, v1, 4, 1\nv_lshlrev_b32 v9, 1, v9\nv_xor_b32 v8, v8, v9")
    a(f"s_mov_b32 s43, {WP}\nv_mul_lo_u32 v3, v3, s43")
    for q in range(4):
        a(f"v_xor_b32 v9, {4*(q&1)}, v8\nv_lshl_add_u32 v{4+q}, v9, 4, v3")
        if q: a(f"v_add_u32 v{4+q}, {8*q*WP - 1024*q}, v{4+q}")
    a("v_lshrrev_b32 v8, 4, v1\nv_bfe_u32 v9, v1, 2, 2\nv_and_b32 v10, 3, v1")
    a("v_lshl_add_u32 v11, v8, 3, v9\nv_lshlrev_b32 v11, 7, v11\nv_lshl_add_u32 v11, v10, 3, v11")
    a(f"v_mul_u32_u24 v16, {R*4096}, v2\nv_add_u32 v11, v11, v16")
    a("v_lshrrev_b32 v9, 1, v9\nv_and_b32 v16, 1, v8\nv_lshl_or_b32 v9, v16, 1, v9\nv_xor_b32 v9, v9, v2")
    for t in range(4):
        a(f"v_xor_b32 v16, {t}, v9\nv_lshl_add_u32 v{12+t}, v16, 5, v11")
    a("v_lshlrev_b32 v17, 4, v1")
    for tau in range(1, 4):
        a(f"v_xor_b32 v16, {tau}, v2\nv_mul_u32_u24 v16, {3*NA*1024}, v16\nv_add_u32 v16, {RED}, v16\nv_add_u32 v{17+tau}, v16, v17")
    a(f"v_mul_u32_u24 v16, {3*NA*1024}, v2\nv_add_u32 v16, {RED}, v16\nv_add_u32 v21, v16, v17")
    a("s_waitcnt lgkmcnt(0)")
    srd(a, 12, 4, W1_BYTES if g1 else W2_BYTES)
    srd(a, 16, 6, F * 2 if g1 else S * 2)
    if g1:
        srd(a, 20, 8, H_BYTES, H_OFF); srd(a, 24, 8, U_BYTES, U_OFF)
    else:
        srd(a, 20, 8, U_BYTES, U_OFF); srd(a, 24, 10, X_BYTES)
    a(f"s_mul_i32 s44, s42, {32*WP}\ns_lshl_b32 s46, s40, 7\ns_add_u32 s44, s44, s46")
    a(f"s_lshl_b32 s45, s42, 15\ns_mul_i32 s46, s41, {NA*1024}\ns_add_u32 s45, s45, s46")
    a(f"s_mul_i32 s47, s42, {R*4096}")
    if g1:
        a("v_lshlrev_b32 v16, 3, v8\nv_lshl_add_u32 v16, v2, 5, v16\ns_lshl_b32 s46, s40, 7")
        a("buffer_load_dwordx2 v[22:23], v16, s[16:19], s46 offen")
    else:
        a("v_and_b32 v16, 15, v1\nv_lshlrev_b32 v16, 1, v16\nv_lshl_add_u32 v16, v2, 5, v16\ns_lshl_b32 s46, s40, 7")
        a("buffer_load_ushort v22, v16, s[16:19], s46 offen")
    ACC = 32; WF = ACC + 16 * NA; AF = WF + 16
    for i in range(16 * NA): a(f"v_mov_b32 v{ACC+i}, 0")
    def issue(i):
        a(f"s_add_u32 m0, s47, {(i % R)*4096}\ns_nop 0")
        for q in range(4):
            a(f"buffer_load_dwordx4 v{4+q}, s[12:15], s44 offen offset:{1024*q} lds")
        for ab in range(NA):
            r = AF + ((i % R) * NA + ab) * 4
            a(f"buffer_load_dwordx4 v[{r}:{r+3}], v17, s[20:23], s45 offen offset:{1024*ab}")
        a(f"s_add_u32 s44, s44, {128*WP}\ns_add_u32 s45, s45, 131072")
    for i in range(DEPTH): issue(i)
    for j in range(NST):
        if j + DEPTH < NST: issue(j + DEPTH)
        younger = min(NST - 1 - j, DEPTH) * (4 + NA)
        a(f"s_waitcnt vmcnt({younger})")
        for t in range(4):
            for jj in range(2):
                r = WF + 4 * t + 2 * jj
                a(f"ds_read_b64_tr_b16 v[{r}:{r+1}], v{12+t} offset:{(j % R)*4096 + jj*512}")
        for t in range(4):
            a(f"s_waitcnt lgkmcnt({6 - 2*t})")
            for ab in range(NA):
                c = ACC + (t * NA + ab) * 4; w = WF + 4 * t; x = AF + ((j % R) * NA + ab) * 4
                if g1: a(f"v_mfma_f32_16x16x32_bf16 v[{c}:{c+3}], v[{w}:{w+3}], v[{x}:{x+3}], v[{c}:{c+3}]")
                else:  a(f"v_mfma_f32_16x16x32_bf16 v[{c}:{c+3}], v[{x}:{x+3}], v[{w}:{w+3}], v[{c}:{c+3}]")
    a("s_nop 7\ns_nop 1")
    for tau in range(1, 4):
        for ab in range(NA):
            c = ACC + (tau * NA + ab) * 4
            a(f"ds_write_b128 v{17+tau}, v[{c}:{c+3}] offset:{((tau-1)*NA + ab)*1024}")
    a("s_waitcnt lgkmcnt(0)\ns_barrier")
    for tau in range(1, 4):
        for ab in range(NA):
            c = ACC + (tau * NA + ab) * 4
            a(f"ds_read_b128 v[{c}:{c+3}], v21 offset:{((tau-1)*NA + ab)*1024}")
    if g1:
        a("v_lshlrev_b32 v24, 16, v22\nv_and_b32 v25, 0xffff0000, v22\nv_lshlrev_b32 v26, 16, v23\nv_and_b32 v27, 0xffff0000, v23")
    else:
        a("v_lshlrev_b32 v24, 16, v22")
    a("s_waitcnt lgkmcnt(0)")
    for ab in range(NA):
        for r in range(4):
            c = ACC + ab * 4 + r
            for tau in range(1, 4):
                a(f"v_add_f32 v{c}, v{c}, v{ACC + (tau*NA+ab)*4 + r}")
            a(f"v_add_f32 v{c}, v{c}, v{24 + (r if g1 else 0)}")
    T = ACC + NA * 4
    if g1:
        k0 = -2.0 * math.sqrt(2.0 / math.pi) * math.log2(math.e); k1 = k0 * 0.044715
        a(f"s_mov_b32 s48, {f32(k1)}\nv_mov_b32 v28, {f32(k0)}")
        n = NA * 4
        for i in range(n): a(f"v_mul_f32 v{T+i}, v{ACC+i}, v{ACC+i}")
        for i in range(n): a(f"v_fma_f32 v{T+i}, v{T+i}, s48, v28")
        for i in range(n): a(f"v_mul_f32 v{T+i}, v{T+i}, v{ACC+i}")
        for i in range(n): a(f"v_exp_f32 v{T+i}, v{T+i}")
        for i in range(n): a(f"v_add_f32 v{T+i}, 1.0, v{T+i}")
        for i in range(n): a(f"v_rcp_f32 v{T+i}, v{T+i}")
        for i in range(n): a(f"v_mul_f32 v{ACC+i}, v{ACC+i}, v{T+i}")
    for ab in range(4):
        s_ab = min(ab, NA - 1)
        for h in range(2):
            a(f"v_cvt_pk_bf16_f32 v{T + 2*ab + h}, v{ACC + s_ab*4 + 2*h}, v{ACC + s_ab*4 + 2*h + 1}")
    a("s_nop 1")
    for p in range(2):
        for h in range(2):
            a(f"v_permlane16_swap_b32 v{T + 4*p + h}, v{T + 4*p + 2 + h}")
    a("v_and_b32 v9, 1, v8\nv_lshrrev_b32 v10, 1, v8\nv_and_b32 v11, 15, v1")
    if g1:
        a("v_lshlrev_b32 v16, 10, v9\nv_lshl_add_u32 v16, v10, 8, v16\nv_lshl_add_u32 v16, v11, 4, v16")
        a("s_lshl_b32 s46, s40, 1\ns_lshr_b32 s48, s42, 1\ns_add_u32 s46, s46, s48\ns_lshl_b32 s46, s46, 15")
        a("s_and_b32 s48, s42, 1\ns_lshl_b32 s48, s48, 9\ns_add_u32 s46, s46, s48")
        a("s_mul_i32 s48, s41, 3072\ns_add_u32 s46, s46, s48")
        a(f"buffer_store_dwordx4 v[{T}:{T+3}], v16, s[24:27], s46 offen")
        a(f"s_cmp_eq_u32 s41, 10\ns_cbranch_scc1 {L}_end")
        a("v_cmp_eq_u32 vcc, 0, v9\ns_and_saveexec_b64 s[50:51], vcc")
        a(f"buffer_store_dwordx4 v[{T+4}:{T+7}], v16, s[24:27], s46 offen offset:2048")
    else:
        a("v_lshlrev_b32 v16, 10, v11\nv_lshl_add_u32 v16, v9, 5, v16\nv_lshl_add_u32 v16, v10, 4, v16")
        a("s_lshl_b32 s46, s40, 16\ns_lshl_b32 s48, s42, 14\ns_add_u32 s46, s46, s48\ns_lshl_b32 s48, s41, 7\ns_add_u32 s46, s46, s48")
        a(f"buffer_store_dwordx4 v[{T}:{T+3}], v16, s[24:27], s46 offen")
        a(f"buffer_store_dwordx4 v[{T+4}:{T+7}], v16, s[24:27], s46 offen offset:64")
    a(f"{L}_end:\ns_endpgm")
    return AF + R * NA * 4, RED + 4 * 3 * NA * 1024

def main(path, extra_empty=0):
    a = Asm()
    ln_kernel(a)
    v1, l1 = gemm_kernel(a, 1)
    v2, l2 = gemm_kernel(a, 2)
    hdr = open("standalone__mixer_token_mlp__prompt.s.ref").read().split("; Override")[0]
    hdr += "; @launch kernel=ln_kernel grid=(256,1,1) block=(256,1,1) lds=8448\n"
    hdr += f"; @launch kernel=gemm1_kernel grid=(242,1,1) block=(256,1,1) lds={l1}\n"
    hdr += f"; @launch kernel=gemm2_kernel grid=(256,1,1) block=(256,1,1) lds={l2}\n"
    body = a.text()
    d = desc("ln_kernel", 64) + desc("gemm1_kernel", v1) + desc("gemm2_kernel", v2)
    if extra_empty:
        for i in range(extra_empty):
            hdr += "; @launch kernel=empty_kernel grid=(256,1,1) block=(256,1,1) lds=0\n"
        body += ".globl empty_kernel\n.p2align 8\n.type empty_kernel,@function\nempty_kernel:\n    s_endpgm\n"
        d += desc("empty_kernel", 8)
    open(path, "w").write(hdr + '.amdgcn_target "amdgcn-amd-amdhsa--gfx950"\n.text\n' + body + d)

if __name__ == "__main__":
    main(sys.argv[1], int(sys.argv[2]) if len(sys.argv) > 2 else 0)
```

```python
import sys, math, struct

S, D, F = 2048, 512, 1376
W1P, W2P = F * 2, S * 2
X_BYTES, W1_BYTES, W2_BYTES = S * D * 2, S * F * 2, F * S * 2
H_OFF, H_BYTES = 0, S * D * 2
U_OFF, U_BYTES = 2 << 20, 43 * 32 * 1024

def f32(x): return "0x%08x" % struct.unpack("<I", struct.pack("<f", x))[0]

class Asm:
    def __init__(self): self.l = []
    def __call__(self, s):
        for line in s.strip("\n").split("\n"):
            self.l.append("    " + line.strip() if not line.strip().endswith(":") else line.strip())
    def text(self): return "\n".join(self.l) + "\n"

def srd(a, d, b, nbytes, off=0):
    if off:
        a(f"s_add_u32 s{d}, s{b}, {off}\ns_addc_u32 s{d+1}, s{b+1}, 0")
    else:
        a(f"s_mov_b32 s{d}, s{b}\ns_mov_b32 s{d+1}, s{b+1}")
    a(f"s_mov_b32 s{d+2}, {nbytes}\ns_mov_b32 s{d+3}, 0x20000")

def head(a, name):
    a.l.append(f".globl {name}\n.p2align 8\n.type {name},@function\n{name}:")

def desc(name, vgpr, sgpr=96, accum=None):
    accum = accum or ((vgpr + 3) // 4 * 4)
    return f""".section .rodata,"a"
.p2align 6
.amdhsa_kernel {name}
  .amdhsa_next_free_vgpr {vgpr}
  .amdhsa_next_free_sgpr {sgpr}
  .amdhsa_accum_offset {accum}
  .amdhsa_group_segment_fixed_size 0
  .amdhsa_kernarg_size 64
  .amdhsa_user_sgpr_count 2
  .amdhsa_user_sgpr_kernarg_segment_ptr 1
  .amdhsa_system_sgpr_workgroup_id_x 1
.end_amdhsa_kernel
"""

DIAG = False
OPT = dict(map=False, rot=False)
STAMP_OFF = 16 << 20
def stamp(a, n):
    if DIAG: a(f"s_memrealtime s[{64+2*n}:{65+2*n}]")
def stamp_flush(a, launch, nst, wsreg):
    if not DIAG: return
    a("s_mov_b64 exec, -1")
    a("s_waitcnt vmcnt(0)")
    stamp(a, nst - 1)
    a("s_waitcnt lgkmcnt(0)")
    srd(a, 60, wsreg, 4 << 20, STAMP_OFF)
    a("v_lshrrev_b32 v1, 6, v0\nv_lshlrev_b32 v1, 6, v1")
    a(f"s_lshl_b32 s59, s2, 9\ns_add_u32 s59, s59, {launch*256*512}")
    a("v_and_b32 v2, 63, v0\nv_cmp_eq_u32 vcc, 0, v2\ns_and_saveexec_b64 s[56:57], vcc")
    for i in range(nst):
        a(f"v_mov_b32 v3, s{64+2*i}\nbuffer_store_dword v3, v1, s[60:63], s59 offen offset:{4*i}\ns_nop 1")

def wave_allreduce(a, regs, tmps):
    for ctrl in ("quad_perm:[1,0,3,2]", "quad_perm:[2,3,0,1]", "row_half_mirror", "row_mirror"):
        a("s_nop 1")
        for r in regs:
            a(f"v_add_f32_dpp v{r}, v{r}, v{r} {ctrl} row_mask:0xf bank_mask:0xf")
    for op in ("v_permlane16_swap_b32", "v_permlane32_swap_b32"):
        for r, t in zip(regs, tmps):
            a(f"v_mov_b32 v{t}, v{r}")
        a("s_nop 1")
        for r, t in zip(regs, tmps):
            a(f"{op} v{r}, v{t}")
        a("s_nop 1")
        for r, t in zip(regs, tmps):
            a(f"v_add_f32 v{r}, v{r}, v{t}")

def round_bf16(a, r):
    a(f"v_cvt_pk_bf16_f32 v{r}, v{r}, v{r}\nv_and_b32 v{r}, 0xffff0000, v{r}")

def ln_kernel(a):
    head(a, "ln_kernel")
    stamp(a, 0)
    a("s_cmp_ge_u32 s2, 256\ns_cbranch_scc1 LN_end")
    a("s_load_dwordx2 s[4:5], s[0:1], 0\ns_load_dwordx2 s[6:7], s[0:1], 56")
    a("v_and_b32 v1, 63, v0\nv_lshrrev_b32 v2, 6, v0")
    a("v_lshlrev_b32 v3, 11, v2\nv_lshl_add_u32 v3, v1, 4, v3")
    a("s_lshl_b32 s3, s2, 13")
    a("s_waitcnt lgkmcnt(0)")
    srd(a, 8, 4, X_BYTES); srd(a, 12, 6, H_BYTES, H_OFF)
    a("buffer_load_dwordx4 v[8:11], v3, s[8:11], s3 offen")
    a("buffer_load_dwordx4 v[12:15], v3, s[8:11], s3 offen offset:1024")
    P = 1056
    a(f"v_mul_u32_u24 v4, {2*P}, v2\nv_lshl_add_u32 v4, v1, 4, v4")
    a("v_lshrrev_b32 v5, 4, v1\nv_bfe_u32 v6, v1, 2, 2\nv_and_b32 v7, 3, v1")
    a(f"v_mul_u32_u24 v6, {P}, v6")
    a("v_lshl_add_u32 v48, v2, 3, v5")
    a("v_lshl_add_u32 v6, v48, 5, v6\nv_lshl_add_u32 v6, v7, 3, v6")
    a("v_and_b32 v7, 15, v1\nv_lshlrev_b32 v7, 4, v7\nv_lshl_add_u32 v7, v48, 10, v7")
    a("s_lshr_b32 s16, s2, 2\ns_lshl_b32 s16, s16, 15\ns_and_b32 s17, s2, 3\ns_lshl_b32 s17, s17, 8\ns_add_u32 s16, s16, s17")
    a("s_waitcnt vmcnt(0)")
    stamp(a, 1)
    for row in range(2):
        for i in range(4):
            src = 8 + 4 * row + i; dst = 16 + 8 * row + 2 * i
            a(f"v_lshlrev_b32 v{dst}, 16, v{src}\nv_and_b32 v{dst+1}, 0xffff0000, v{src}")
    for row in range(2):
        b = 16 + 8 * row; s = 32 + row
        a(f"v_add_f32 v{s}, v{b}, v{b+1}")
        for i in range(2, 8): a(f"v_add_f32 v{s}, v{s}, v{b+i}")
    wave_allreduce(a, [32, 33], [34, 35])
    for row in range(2): a(f"v_mul_f32 v{32+row}, {f32(1.0/D)}, v{32+row}")
    for row in range(2):
        b = 16 + 8 * row; s = 36 + row
        for i in range(8):
            a(f"v_sub_f32 v{40+row}, v{b+i}, v{32+row}")
            a(f"v_mul_f32 v{s}, v{40+row}, v{40+row}" if i == 0 else f"v_fmac_f32 v{s}, v{40+row}, v{40+row}")
    wave_allreduce(a, [36, 37], [34, 35])
    for row in range(2):
        s = 36 + row
        a(f"v_mul_f32 v{s}, {f32(1.0/D)}, v{s}"); round_bf16(a, s)
        a(f"v_add_f32 v{s}, {f32(1e-5)}, v{s}"); round_bf16(a, s)
        a(f"v_sqrt_f32 v{s}, v{s}\ns_nop 0"); round_bf16(a, s)
        a(f"v_rcp_f32 v{s}, v{s}")
        round_bf16(a, 32 + row)
    for row in range(2):
        b = 16 + 8 * row
        for i in range(4):
            x0, x1 = b + 2 * i, b + 2 * i + 1
            a(f"v_sub_f32 v{x0}, v{x0}, v{32+row}\nv_sub_f32 v{x1}, v{x1}, v{32+row}")
            a(f"v_cvt_pk_bf16_f32 v{x1}, v{x0}, v{x1}")
            a(f"v_lshlrev_b32 v{x0}, 16, v{x1}\nv_and_b32 v{x1}, 0xffff0000, v{x1}")
            a(f"v_mul_f32 v{x0}, v{x0}, v{36+row}\nv_mul_f32 v{x1}, v{x1}, v{36+row}")
            a(f"v_cvt_pk_bf16_f32 v{8+4*row+i}, v{x0}, v{x1}")
    a(f"ds_write_b128 v4, v[8:11]\nds_write_b128 v4, v[12:15] offset:{P}")
    a("s_waitcnt lgkmcnt(0)\ns_barrier")
    for it in range(2):
        for j in range(2):
            a(f"ds_read_b64_tr_b16 v[{16+4*it+2*j}:{17+4*it+2*j}], v6 offset:{j*4*P + it*128}")
    a("s_waitcnt lgkmcnt(0)")
    a("s_add_u32 s17, s16, 4096")
    a("buffer_store_dwordx4 v[16:19], v7, s[12:15], s16 offen")
    a("buffer_store_dwordx4 v[20:23], v7, s[12:15], s17 offen")
    stamp(a, 2)
    stamp_flush(a, 0, 4, 6)
    a("LN_end:\ns_endpgm")

def gemm_kernel(a, which, DEPTH=3):
    g1 = which == 1
    name = "gemm1_kernel" if g1 else "gemm2_kernel"
    L = "G1" if g1 else "G2"
    NA = 3 if g1 else 4
    NST = 16 if g1 else 11
    WP = W1P if g1 else W2P
    NWG = (248 if OPT['map'] else 242) if g1 else 256
    R = DEPTH + 1
    RED = 4 * R * 4096
    head(a, name)
    stamp(a, 0)
    a(f"s_cmp_ge_u32 s2, {NWG}\ns_cbranch_scc1 {L}_end")
    a(f"s_load_dwordx2 s[4:5], s[0:1], {8 if g1 else 24}")
    a(f"s_load_dwordx2 s[6:7], s[0:1], {16 if g1 else 32}")
    a("s_load_dwordx2 s[8:9], s[0:1], 56")
    a("s_load_dwordx2 s[10:11], s[0:1], 40")
    if not OPT["map"]:
        if g1:
            a("s_mul_i32 s40, s2, 5958\ns_lshr_b32 s40, s40, 16")
            a("s_mul_i32 s41, s40, 11\ns_sub_u32 s41, s2, s41")
        else:
            a("s_lshr_b32 s40, s2, 3\ns_and_b32 s41, s2, 7")
    elif g1:
        a("s_and_b32 s46, s2, 7\ns_mul_i32 s46, s46, 31\ns_lshr_b32 s48, s2, 3\ns_add_u32 s46, s46, s48")
        a(f"s_cmp_ge_u32 s46, 242\ns_cbranch_scc1 {L}_end")
        a("s_mul_i32 s40, s46, 5958\ns_lshr_b32 s40, s40, 16")
        a("s_mul_i32 s41, s40, 11\ns_sub_u32 s41, s46, s41")
    else:
        a("s_and_b32 s40, s2, 7\ns_lshl_b32 s40, s40, 2\ns_lshr_b32 s46, s2, 6\ns_add_u32 s40, s40, s46")
        a("s_bfe_u32 s41, s2, 0x30003")
    if not OPT["rot"]:
        a("s_mov_b32 s49, 0")
    elif g1:
        a("s_mul_i32 s49, s41, 3\ns_lshr_b32 s49, s49, 1\ns_mul_i32 s46, s40, 5\ns_add_u32 s49, s49, s46\ns_and_b32 s49, s49, 15")
    else:
        a("s_and_b32 s46, s40, 3\ns_lshl_b32 s46, s46, 1\ns_add_u32 s46, s46, s41\ns_and_b32 s46, s46, 7\ns_mul_i32 s49, s46, 11\ns_lshr_b32 s49, s49, 3")
    a("v_and_b32 v1, 63, v0\nv_lshrrev_b32 v2, 6, v0\ns_nop 0\nv_readfirstlane_b32 s42, v2")
    a("v_lshrrev_b32 v3, 3, v1")
    a("v_and_b32 v8, 7, v1\nv_bfe_u32 v9, v1, 4, 1\nv_lshlrev_b32 v9, 1, v9\nv_xor_b32 v8, v8, v9")
    a(f"s_mov_b32 s43, {WP}\nv_mul_lo_u32 v3, v3, s43")
    for q in range(4):
        a(f"v_xor_b32 v9, {4*(q&1)}, v8\nv_lshl_add_u32 v{4+q}, v9, 4, v3")
        if q: a(f"v_add_u32 v{4+q}, {8*q*WP - 1024*q}, v{4+q}")
    a("v_lshrrev_b32 v8, 4, v1\nv_bfe_u32 v9, v1, 2, 2\nv_and_b32 v10, 3, v1")
    a("v_lshl_add_u32 v11, v8, 3, v9\nv_lshlrev_b32 v11, 7, v11\nv_lshl_add_u32 v11, v10, 3, v11")
    a(f"v_mul_u32_u24 v16, {R*4096}, v2\nv_add_u32 v11, v11, v16")
    a("v_lshrrev_b32 v9, 1, v9\nv_and_b32 v16, 1, v8\nv_lshl_or_b32 v9, v16, 1, v9\nv_xor_b32 v9, v9, v2")
    for t in range(4):
        a(f"v_xor_b32 v16, {t}, v9\nv_lshl_add_u32 v{12+t}, v16, 5, v11")
    a("v_lshlrev_b32 v17, 4, v1")
    for tau in range(1, 4):
        a(f"v_xor_b32 v16, {tau}, v2\nv_mul_u32_u24 v16, {3*NA*1024}, v16\nv_add_u32 v16, {RED}, v16\nv_add_u32 v{17+tau}, v16, v17")
    a(f"v_mul_u32_u24 v16, {3*NA*1024}, v2\nv_add_u32 v16, {RED}, v16\nv_add_u32 v21, v16, v17")
    a("s_waitcnt lgkmcnt(0)")
    srd(a, 12, 4, W1_BYTES if g1 else W2_BYTES)
    srd(a, 16, 6, F * 2 if g1 else S * 2)
    if g1:
        srd(a, 20, 8, H_BYTES, H_OFF); srd(a, 24, 8, U_BYTES, U_OFF)
    else:
        srd(a, 20, 8, U_BYTES, U_OFF); srd(a, 24, 10, X_BYTES)
    a(f"s_mul_i32 s44, s42, {32*WP}\ns_lshl_b32 s46, s40, 7\ns_add_u32 s44, s44, s46")
    a(f"s_lshl_b32 s45, s42, 15\ns_mul_i32 s46, s41, {NA*1024}\ns_add_u32 s45, s45, s46")
    a(f"s_mov_b32 s52, s44\ns_mov_b32 s53, s45\ns_add_u32 s54, s45, {NST*131072}")
    a(f"s_mul_i32 s46, s49, {128*WP}\ns_add_u32 s44, s44, s46\ns_lshl_b32 s46, s49, 17\ns_add_u32 s45, s45, s46")
    a(f"s_mul_i32 s47, s42, {R*4096}")
    if g1:
        a("v_lshlrev_b32 v16, 3, v8\nv_lshl_add_u32 v16, v2, 5, v16\ns_lshl_b32 s46, s40, 7")
        a("buffer_load_dwordx2 v[22:23], v16, s[16:19], s46 offen")
    else:
        a("v_and_b32 v16, 15, v1\nv_lshlrev_b32 v16, 1, v16\nv_lshl_add_u32 v16, v2, 5, v16\ns_lshl_b32 s46, s40, 7")
        a("buffer_load_ushort v22, v16, s[16:19], s46 offen")
    ACC = 32; WF = ACC + 16 * NA; AF = WF + 16
    for i in range(16 * NA): a(f"v_mov_b32 v{ACC+i}, 0")
    def issue(i):
        a(f"s_add_u32 m0, s47, {(i % R)*4096}\ns_nop 0")
        for q in range(4):
            a(f"buffer_load_dwordx4 v{4+q}, s[12:15], s44 offen offset:{1024*q} lds")
        for ab in range(NA):
            r = AF + ((i % R) * NA + ab) * 4
            a(f"buffer_load_dwordx4 v[{r}:{r+3}], v17, s[20:23], s45 offen offset:{1024*ab}")
        a(f"s_add_u32 s44, s44, {128*WP}\ns_add_u32 s45, s45, 131072")
        a("s_cmp_ge_u32 s45, s54\ns_cselect_b32 s44, s52, s44\ns_cselect_b32 s45, s53, s45")
    stamp(a, 1)
    for i in range(DEPTH): issue(i)
    for j in range(NST):
        if j + DEPTH < NST: issue(j + DEPTH)
        younger = min(NST - 1 - j, DEPTH) * (4 + NA)
        a(f"s_waitcnt vmcnt({younger})")
        if j == 0: stamp(a, 2)
        if j == NST // 2: stamp(a, 3)
        for t in range(4):
            for jj in range(2):
                r = WF + 4 * t + 2 * jj
                a(f"ds_read_b64_tr_b16 v[{r}:{r+1}], v{12+t} offset:{(j % R)*4096 + jj*512}")
        for t in range(4):
            a(f"s_waitcnt lgkmcnt({6 - 2*t})")
            for ab in range(NA):
                c = ACC + (t * NA + ab) * 4; w = WF + 4 * t; x = AF + ((j % R) * NA + ab) * 4
                if g1: a(f"v_mfma_f32_16x16x32_bf16 v[{c}:{c+3}], v[{w}:{w+3}], v[{x}:{x+3}], v[{c}:{c+3}]")
                else:  a(f"v_mfma_f32_16x16x32_bf16 v[{c}:{c+3}], v[{x}:{x+3}], v[{w}:{w+3}], v[{c}:{c+3}]")
    stamp(a, 4)
    a("s_nop 7\ns_nop 1")
    for tau in range(1, 4):
        for ab in range(NA):
            c = ACC + (tau * NA + ab) * 4
            a(f"ds_write_b128 v{17+tau}, v[{c}:{c+3}] offset:{((tau-1)*NA + ab)*1024}")
    a("s_waitcnt lgkmcnt(0)\ns_barrier")
    for tau in range(1, 4):
        for ab in range(NA):
            c = ACC + (tau * NA + ab) * 4
            a(f"ds_read_b128 v[{c}:{c+3}], v21 offset:{((tau-1)*NA + ab)*1024}")
    if g1:
        a("v_lshlrev_b32 v24, 16, v22\nv_and_b32 v25, 0xffff0000, v22\nv_lshlrev_b32 v26, 16, v23\nv_and_b32 v27, 0xffff0000, v23")
    else:
        a("v_lshlrev_b32 v24, 16, v22")
    a("s_waitcnt lgkmcnt(0)")
    for ab in range(NA):
        for r in range(4):
            c = ACC + ab * 4 + r
            for tau in range(1, 4):
                a(f"v_add_f32 v{c}, v{c}, v{ACC + (tau*NA+ab)*4 + r}")
            a(f"v_add_f32 v{c}, v{c}, v{24 + (r if g1 else 0)}")
    T = ACC + NA * 4
    if g1:
        k0 = -2.0 * math.sqrt(2.0 / math.pi) * math.log2(math.e); k1 = k0 * 0.044715
        a(f"s_mov_b32 s48, {f32(k1)}\nv_mov_b32 v28, {f32(k0)}")
        n = NA * 4
        for i in range(n): a(f"v_mul_f32 v{T+i}, v{ACC+i}, v{ACC+i}")
        for i in range(n): a(f"v_fma_f32 v{T+i}, v{T+i}, s48, v28")
        for i in range(n): a(f"v_mul_f32 v{T+i}, v{T+i}, v{ACC+i}")
        for i in range(n): a(f"v_exp_f32 v{T+i}, v{T+i}")
        for i in range(n): a(f"v_add_f32 v{T+i}, 1.0, v{T+i}")
        for i in range(n): a(f"v_rcp_f32 v{T+i}, v{T+i}")
        for i in range(n): a(f"v_mul_f32 v{ACC+i}, v{ACC+i}, v{T+i}")
    for ab in range(4):
        s_ab = min(ab, NA - 1)
        for h in range(2):
            a(f"v_cvt_pk_bf16_f32 v{T + 2*ab + h}, v{ACC + s_ab*4 + 2*h}, v{ACC + s_ab*4 + 2*h + 1}")
    a("s_nop 1")
    for p in range(2):
        for h in range(2):
            a(f"v_permlane16_swap_b32 v{T + 4*p + h}, v{T + 4*p + 2 + h}")
    a("v_and_b32 v9, 1, v8\nv_lshrrev_b32 v10, 1, v8\nv_and_b32 v11, 15, v1")
    if g1:
        a("v_lshlrev_b32 v16, 10, v9\nv_lshl_add_u32 v16, v10, 8, v16\nv_lshl_add_u32 v16, v11, 4, v16")
        a("s_lshl_b32 s46, s40, 1\ns_lshr_b32 s48, s42, 1\ns_add_u32 s46, s46, s48\ns_lshl_b32 s46, s46, 15")
        a("s_and_b32 s48, s42, 1\ns_lshl_b32 s48, s48, 9\ns_add_u32 s46, s46, s48")
        a("s_mul_i32 s48, s41, 3072\ns_add_u32 s46, s46, s48")
        a(f"buffer_store_dwordx4 v[{T}:{T+3}], v16, s[24:27], s46 offen")
        a(f"s_cmp_eq_u32 s41, 10\ns_cbranch_scc1 {L}_fin")
        a("v_cmp_eq_u32 vcc, 0, v9\ns_and_saveexec_b64 s[50:51], vcc")
        a(f"buffer_store_dwordx4 v[{T+4}:{T+7}], v16, s[24:27], s46 offen offset:2048")
    else:
        a("v_lshlrev_b32 v16, 10, v11\nv_lshl_add_u32 v16, v9, 5, v16\nv_lshl_add_u32 v16, v10, 4, v16")
        a("s_lshl_b32 s46, s40, 16\ns_lshl_b32 s48, s42, 14\ns_add_u32 s46, s46, s48\ns_lshl_b32 s48, s41, 7\ns_add_u32 s46, s46, s48")
        a(f"buffer_store_dwordx4 v[{T}:{T+3}], v16, s[24:27], s46 offen")
        a(f"buffer_store_dwordx4 v[{T+4}:{T+7}], v16, s[24:27], s46 offen offset:64")
    a(f"{L}_fin:")
    stamp(a, 5)
    stamp_flush(a, which, 7, 8)
    a(f"{L}_end:\ns_endpgm")
    return AF + R * NA * 4, RED + 4 * 3 * NA * 1024

def main(path, extra_empty=0):
    a = Asm()
    ln_kernel(a)
    v1, l1 = gemm_kernel(a, 1)
    v2, l2 = gemm_kernel(a, 2)
    hdr = open("standalone__mixer_token_mlp__prompt.s.ref").read().split("; Override")[0]
    hdr += "; @launch kernel=ln_kernel grid=(256,1,1) block=(256,1,1) lds=8448\n"
    hdr += f"; @launch kernel=gemm1_kernel grid=({248 if OPT['map'] else 242},1,1) block=(256,1,1) lds={l1}\n"
    hdr += f"; @launch kernel=gemm2_kernel grid=(256,1,1) block=(256,1,1) lds={l2}\n"
    body = a.text()
    d = desc("ln_kernel", 64) + desc("gemm1_kernel", v1) + desc("gemm2_kernel", v2)
    if extra_empty:
        for i in range(extra_empty):
            hdr += "; @launch kernel=empty_kernel grid=(256,1,1) block=(256,1,1) lds=0\n"
        body += ".globl empty_kernel\n.p2align 8\n.type empty_kernel,@function\nempty_kernel:\n    s_endpgm\n"
        d += desc("empty_kernel", 8)
    open(path, "w").write(hdr + '.amdgcn_target "amdgcn-amd-amdhsa--gfx950"\n.text\n' + body + d)

if __name__ == "__main__":
    DIAG = "diag" in sys.argv
    for k in OPT: OPT[k] = k in sys.argv
    main(sys.argv[1], int(sys.argv[2]) if len(sys.argv) > 2 else 0)
```

```python
import sys, math, struct

S, D, F = 2048, 512, 1376
W1P, W2P = F * 2, S * 2
X_BYTES, W1_BYTES, W2_BYTES = S * D * 2, S * F * 2, F * S * 2
H_OFF, H_BYTES = 0, S * D * 2
U_OFF, U_BYTES = 2 << 20, 43 * 32 * 1024
STAMP_OFF = 16 << 20
FL_OFF = 4 << 20
NAME = "standalone__mixer_token_mlp__prompt_kernel"

def f32(x): return "0x%08x" % struct.unpack("<I", struct.pack("<f", x))[0]

class Asm:
    def __init__(self): self.l = []; self.vm = []
    def __call__(self, s):
        for line in s.strip("\n").split("\n"):
            line = line.strip()
            self.l.append(line if line.endswith(":") else "    " + line)
    def vmem(self, s, label):
        self(s); self.vm.append(label)
    def wait(self, label, extra=""):
        idx = max(i for i, l in enumerate(self.vm) if l == label)
        n = len(self.vm) - 1 - idx
        assert n <= 63, (label, n)
        self(f"s_waitcnt vmcnt({n}) {extra}".strip())
    def text(self): return "\n".join(self.l) + "\n"

def srd(a, d, b, nbytes, off=0):
    if off: a(f"s_add_u32 s{d}, s{b}, {off}\ns_addc_u32 s{d+1}, s{b+1}, 0")
    else:   a(f"s_mov_b32 s{d}, s{b}\ns_mov_b32 s{d+1}, s{b+1}")
    a(f"s_mov_b32 s{d+2}, {nbytes}\ns_mov_b32 s{d+3}, 0x20000")

def wave_allreduce(a, regs, tmps):
    for ctrl in ("quad_perm:[1,0,3,2]", "quad_perm:[2,3,0,1]", "row_half_mirror", "row_mirror"):
        a("s_nop 1")
        for r in regs: a(f"v_add_f32_dpp v{r}, v{r}, v{r} {ctrl} row_mask:0xf bank_mask:0xf")
    for op in ("v_permlane16_swap_b32", "v_permlane32_swap_b32"):
        for r, t in zip(regs, tmps): a(f"v_mov_b32 v{t}, v{r}")
        a("s_nop 1")
        for r, t in zip(regs, tmps): a(f"{op} v{r}, v{t}")
        a("s_nop 1")
        for r, t in zip(regs, tmps): a(f"v_add_f32 v{r}, v{r}, v{t}")

def round_bf16(a, r):
    a(f"v_cvt_pk_bf16_f32 v{r}, v{r}, v{r}\nv_and_b32 v{r}, 0xffff0000, v{r}")

def gen(P):
    DIAG = P["diag"]
    a = Asm()
    names = []; pend = [None]
    vST = 25
    def flush_stamp():
        if pend[0] is not None:
            a(f"v_writelane_b32 v{vST}, s{76 + 2*(pend[0] & 1)}, {pend[0]}"); pend[0] = None
    def stamp(name, sync=False):
        if not DIAG: return
        n = len(names); names.append(str(name)); assert n < 63
        if n: flush_stamp()
        a(f"s_memrealtime s[{76+2*(n&1)}:{77+2*(n&1)}]"); pend[0] = n
        if n == 0: a(f"v_mov_b32 v{vST}, 0")
        if sync: a("s_waitcnt lgkmcnt(0)"); flush_stamp()
    sX, sW1, sW2, sH, sU, sOUT, sDBG, sB1, sB2, sCODE = 20, 24, 28, 32, 36, 40, 44, 48, 52, 56
    sUst = 4
    sHst = 8
    sWAVE, sFT, sDT, sST, sDT2, sT0, sT1 = 60, 61, 62, 63, 64, 65, 66
    sWoff, sWbase, sWend, sAoff, sAbase, sAend, sRING = 67, 68, 69, 70, 71, 72, 73
    sROT2, sSPIN = 74, 75
    sUo = 12
    NSLOT = 7; RINGB = NSLOT * 4096; RED = 4 * RINGB; LDS = RED + 4 * 9216
    LNP = 1056
    vLANE, vWAVE, vG = 1, 2, 3
    vD1, vD2, vTR = 4, 8, 12
    vA16 = 16
    vRW1, vRR1 = 17, 18
    vRW2, vRR2 = 21, 22
    vB1, vB2 = 26, 28
    vFLAG, vT0, vT1 = 29, 30, 31
    vEP = 252; vFL = 254
    FS = P["fstride"]
    ACC = 32
    AF = 96
    nt = P["ntx"]
    SC = P["sc"]

    a.l.append(f".globl {NAME}\n.p2align 8\n.type {NAME},@function\n{NAME}:")
    stamp("start")
    a("s_cmp_ge_u32 s2, 256\ns_cbranch_scc1 L_end")
    a("s_load_dwordx16 s[4:19], s[0:1], 0")
    a(f"v_and_b32 v{vLANE}, 63, v0\nv_lshrrev_b32 v{vWAVE}, 6, v0\nv_lshlrev_b32 v{vA16}, 4, v{vLANE}")
    a(f"v_readfirstlane_b32 s{sWAVE}, v{vWAVE}")
    a(f"v_lshl_add_u32 v{vT0}, v{vWAVE}, 11, v{vA16}")
    a(f"s_lshl_b32 s3, s2, 13")
    a(f"s_and_b32 s{sT0}, s2, 7\ns_lshr_b32 s{sT1}, s2, 3")
    a(f"s_lshl_b32 s{sST}, s{sT0}, 2\ns_lshr_b32 s{sDT2}, s{sT1}, 3\ns_add_u32 s{sST}, s{sST}, s{sDT2}\ns_and_b32 s{sDT2}, s{sT1}, 7")
    a(f"s_and_b32 s{sFT}, s{sT0}, 3\ns_lshl_b32 s{sFT}, s{sFT}, 3")
    a(f"s_lshr_b32 s{sWoff}, 0x5C3D1D00, s{sFT}\ns_and_b32 s{sWoff}, s{sWoff}, 0xff")
    a(f"s_lshr_b32 s{sWend}, 0x1D1F201D, s{sFT}\ns_and_b32 s{sWend}, s{sWend}, 0xff")
    a(f"s_cmp_lt_u32 s{sT1}, s{sWend}\ns_cselect_b32 s{sSPIN}, -1, 0")
    a(f"s_add_u32 s{sWend}, s{sWend}, s{sWoff}\ns_add_u32 s{sDT}, s{sWoff}, s{sT1}")
    a(f"s_mul_i32 s{sFT}, s{sDT}, 5958\ns_lshr_b32 s{sFT}, s{sFT}, 16\ns_mul_i32 s{sWbase}, s{sFT}, 11")
    a(f"s_max_u32 s{sWoff}, s{sWoff}, s{sWbase}\ns_add_u32 s{sAoff}, s{sWbase}, 11\ns_min_u32 s{sWend}, s{sWend}, s{sAoff}")
    a(f"s_sub_u32 s{sWend}, s{sWend}, s{sWoff}\ns_sub_u32 s{sWoff}, s{sDT}, s{sWoff}\ns_sub_u32 s{sDT}, s{sDT}, s{sWbase}")
    a(f"s_min_u32 s{sWend}, s{sWend}, 8\ns_max_u32 s{sWend}, s{sWend}, 4\ns_sub_u32 s{sWend}, s{sWend}, 4\ns_lshl_b32 s{sWend}, s{sWend}, 3")
    a(f"s_mov_b32 s{sAoff}, 0x242A3340\ns_mov_b32 s{sAbase}, 23\ns_lshr_b64 s[{sAoff}:{sAbase}], s[{sAoff}:{sAbase}], s{sWend}\ns_and_b32 s{sAoff}, s{sAoff}, 0xff")
    a(f"s_mul_i32 s{sROT2}, s{sWoff}, s{sAoff}\ns_lshr_b32 s{sROT2}, s{sROT2}, 4")
    a(f"s_lshr_b32 s{sT0}, s{sT0}, 2\ns_mul_i32 s{sT0}, s{sT0}, 11\ns_add_u32 s{sFT}, s{sFT}, s{sT0}")
    a("s_getpc_b64 s[56:57]\nL_pc:")
    a("s_waitcnt lgkmcnt(0)")
    srd(a, sX, 4, X_BYTES)
    srd(a, sDBG, 18, 4096 + 256 * FS, FL_OFF)
    a(f"v_mov_b32 v{vT1}, 0")
    a.vmem(f"buffer_load_dwordx2 v[{vEP}:{vEP+1}], v{vT1}, s[{sDBG}:{sDBG+3}], 0 offen {SC}", "ep")
    a.vmem(f"buffer_load_dwordx4 v[{AF}:{AF+3}], v{vT0}, s[{sX}:{sX+3}], s3 offen {nt}", "x")
    a.vmem(f"buffer_load_dwordx4 v[{AF+4}:{AF+7}], v{vT0}, s[{sX}:{sX+3}], s3 offen offset:1024 {nt}", "x")
    a(f"s_mov_b32 s{sCODE+2}, L_code_end - L_pc\ns_mov_b32 s{sCODE+3}, 0x20000")
    if P["cpf"]:
        a(f"s_lshl_b32 s{sT0}, s{sT1}, 2\ns_add_u32 s{sT0}, s{sT0}, s{sWAVE}\ns_lshl_b32 s{sT0}, s{sT0}, 10")
        a.vmem(f"buffer_load_dwordx4 v[{AF+8}:{AF+11}], v{vA16}, s[{sCODE}:{sCODE+3}], s{sT0} offen", "code")
    srd(a, sW1, 6, W1_BYTES)
    a(f"s_and_b32 s{sW1+2}, s{sW1+2}, s{sSPIN}")
    srd(a, sUst, 18, U_BYTES, U_OFF)
    a(f"s_and_b32 s{sUst+2}, s{sUst+2}, s{sSPIN}")
    a(f"v_lshrrev_b32 v{vT0}, 3, v{vLANE}\nv_and_b32 v{vT1}, 7, v{vLANE}\nv_bfe_u32 v{vG}, v{vLANE}, 4, 1\nv_lshlrev_b32 v{vG}, 1, v{vG}\nv_xor_b32 v{vT1}, v{vT1}, v{vG}")
    a(f"v_mul_u32_u24 v{vFLAG}, {W1P}, v{vT0}")
    for q in range(4):
        a(f"v_xor_b32 v{vG}, {4*(q&1)}, v{vT1}\nv_lshl_add_u32 v{vD1+q}, v{vG}, 4, v{vFLAG}")
        if q: a(f"v_add_u32 v{vD1+q}, {8*q*W1P - 1024*q}, v{vD1+q}")
    a(f"s_mul_i32 s{sT1}, s{sFT}, {P['rotf']}\ns_add_u32 s{sT0}, s{sROT2}, s{sT1}\ns_and_b32 s{sT0}, s{sT0}, 15")
    a(f"s_mul_i32 s{sWbase}, s{sWAVE}, {32*W1P}\ns_lshl_b32 s{sT1}, s{sFT}, 7\ns_add_u32 s{sWbase}, s{sWbase}, s{sT1}")
    a(f"s_add_u32 s{sWend}, s{sWbase}, {16*128*W1P}")
    a(f"s_mul_i32 s{sT1}, s{sT0}, {128*W1P}\ns_add_u32 s{sWoff}, s{sWbase}, s{sT1}")
    a(f"s_mul_i32 s{sRING}, s{sWAVE}, {RINGB}")
    a(f"s_lshl_b32 s{sAbase}, s{sWAVE}, 15\ns_mul_i32 s{sT1}, s{sDT}, 768\ns_add_u32 s{sAbase}, s{sAbase}, s{sT1}")
    a(f"s_add_u32 s{sAend}, s{sAbase}, {16*131072}\ns_lshl_b32 s{sT1}, s{sT0}, 17\ns_add_u32 s{sAoff}, s{sAbase}, s{sT1}")

    slot = [0]
    wslot = {}
    def issue_w(which, j):
        vD, srdr, WP = (vD1, sW1, W1P) if which == 1 else (vD2, sW2, W2P)
        sl = slot[0] % NSLOT; slot[0] += 1; wslot[(which, j)] = sl
        a(f"s_add_u32 m0, s{sRING}, {sl*4096}\ns_nop 0")
        for q in range(4):
            a.vmem(f"buffer_load_dwordx4 v{vD+q}, s[{srdr}:{srdr+3}], s{sWoff} offen offset:{1024*q} {P['ntw'][which-1]} lds", f"w{which}_{j}")
        a(f"s_add_u32 s{sWoff}, s{sWoff}, {128*WP}\ns_cmp_ge_u32 s{sWoff}, s{sWend}\ns_cselect_b32 s{sWoff}, s{sWbase}, s{sWoff}")
    def consume_w(which, j):
        sl = wslot[(which, j)]
        for t in range(4):
            for jj in range(2):
                r = 16 * j + 4 * t + 2 * jj
                a(f"ds_read_b64_tr_b16 a[{r}:{r+1}], v{vTR+t} offset:{sl*4096 + jj*512}")
    PW = P["prew"]
    stamp("iss0")
    for j in range(P["pre0"]): issue_w(1, j)
    srd(a, sW2, 10, W2_BYTES); srd(a, sH, 18, H_BYTES, H_OFF); srd(a, sU, 18, U_BYTES, U_OFF)
    srd(a, sOUT, 14, X_BYTES); srd(a, sB1, 8, F * 2); srd(a, sB2, 12, S * 2)
    srd(a, sHst, 18, H_BYTES, H_OFF)
    a(f"s_and_b32 s{sH+2}, s{sH+2}, s{sSPIN}")
    a(f"v_lshlrev_b32 v{vFLAG}, 12, v{vT0}")
    for q in range(4):
        a(f"v_xor_b32 v{vG}, {4*(q&1)}, v{vT1}\nv_lshl_add_u32 v{vD2+q}, v{vG}, 4, v{vFLAG}")
        if q: a(f"v_add_u32 v{vD2+q}, {8*q*W2P - 1024*q}, v{vD2+q}")
    a(f"v_lshrrev_b32 v{vG}, 4, v{vLANE}\nv_bfe_u32 v{vT0}, v{vLANE}, 2, 2\nv_and_b32 v{vT1}, 3, v{vLANE}")
    a(f"v_lshl_add_u32 v{vFLAG}, v{vG}, 3, v{vT0}\nv_lshlrev_b32 v{vFLAG}, 7, v{vFLAG}\nv_lshl_add_u32 v{vFLAG}, v{vT1}, 3, v{vFLAG}\nv_add_u32 v{vFLAG}, s{sRING}, v{vFLAG}")
    a(f"v_lshrrev_b32 v{vT0}, 1, v{vT0}\nv_and_b32 v{vT1}, 1, v{vG}\nv_lshl_or_b32 v{vT0}, v{vT1}, 1, v{vT0}\nv_xor_b32 v{vT0}, v{vT0}, v{vWAVE}")
    for t in range(4):
        a(f"v_xor_b32 v{vT1}, {t}, v{vT0}\nv_lshl_add_u32 v{vTR+t}, v{vT1}, 5, v{vFLAG}")
    a(f"v_and_b32 v{vT1}, 15, v{vLANE}\nv_lshlrev_b32 v{vT1}, 4, v{vT1}\nv_lshl_add_u32 v{vFLAG}, v{vG}, 13, v{vT1}")
    a(f"v_mul_u32_u24 v{vT0}, 9216, v{vWAVE}\nv_add_u32 v{vT0}, {RED}, v{vT0}\nv_add_u32 v{vRW1}, v{vT0}, v{vA16}")
    a(f"v_add_u32 v{vRW2}, s{sRING}, v{vA16}")
    for tau in range(1, 4):
        a(f"v_xor_b32 v{vT1}, {tau}, v{vWAVE}\nv_mul_u32_u24 v{vT0}, 9216, v{vT1}\nv_add_u32 v{vT0}, {RED}, v{vT0}\nv_add_u32 v{vRR1+tau-1}, v{vT0}, v{vA16}")
        a(f"v_mul_u32_u24 v{vT0}, {RINGB}, v{vT1}\nv_add_u32 v{vRR2+tau-1}, v{vT0}, v{vA16}")
    a(f"v_lshlrev_b32 v{vT0}, 3, v{vG}\nv_lshl_add_u32 v{vT0}, v{vWAVE}, 5, v{vT0}\ns_lshl_b32 s{sT0}, s{sFT}, 7")
    a.vmem(f"buffer_load_dwordx2 v[{vB1}:{vB1+1}], v{vT0}, s[{sB1}:{sB1+3}], s{sT0} offen", "b1")
    a(f"v_and_b32 v{vT1}, 15, v{vLANE}\nv_lshlrev_b32 v{vT1}, 1, v{vT1}\nv_lshl_add_u32 v{vT1}, v{vWAVE}, 5, v{vT1}\ns_lshl_b32 s{sT0}, s{sST}, 7")
    a.vmem(f"buffer_load_ushort v{vB2}, v{vT1}, s[{sB2}:{sB2+3}], s{sT0} offen", "b2")
    for i in range(48): a(f"v_mov_b32 v{ACC+i}, 0")
    XR = AF; XF = AF + 16; ST = AF + 32
    a(f"v_mul_u32_u24 v{ST+10}, {2*LNP}, v{vWAVE}\nv_add_u32 v{ST+10}, {RED}, v{ST+10}\nv_add_u32 v{ST+10}, v{ST+10}, v{vA16}")
    a.wait("x")
    a(f"v_add_u32 v{vEP}, 1, v{vEP}")
    stamp("xarr")
    for row in range(2):
        for i in range(4):
            src = XR + 4 * row + i; dst = XF + 8 * row + 2 * i
            a(f"v_lshlrev_b32 v{dst}, 16, v{src}\nv_and_b32 v{dst+1}, 0xffff0000, v{src}")
    for i in range(1, 8):
        for row in range(2):
            b = XF + 8 * row; s = ST + row
            a(f"v_add_f32 v{s}, v{b}, v{b+1}" if i == 1 else f"v_add_f32 v{s}, v{s}, v{b+i}")
    nxt = P["pre0"]
    if P["lnw"] >= 1: issue_w(1, nxt); nxt += 1
    wave_allreduce(a, [ST, ST + 1], [ST + 2, ST + 3])
    for row in range(2): a(f"v_mul_f32 v{ST+row}, {f32(1.0/D)}, v{ST+row}")
    for i in range(8):
        for row in range(2):
            b = XF + 8 * row; s = ST + 4 + row; t = ST + 6 + row
            a(f"v_sub_f32 v{t}, v{b+i}, v{ST+row}")
        for row in range(2):
            s = ST + 4 + row; t = ST + 6 + row
            a(f"v_mul_f32 v{s}, v{t}, v{t}" if i == 0 else f"v_fmac_f32 v{s}, v{t}, v{t}")
    wave_allreduce(a, [ST + 4, ST + 5], [ST + 2, ST + 3])
    if P["lnw"] >= 2: issue_w(1, nxt); nxt += 1
    for row in range(2):
        s = ST + 4 + row
        a(f"v_mul_f32 v{s}, {f32(1.0/D)}, v{s}"); round_bf16(a, s)
        a(f"v_add_f32 v{s}, {f32(1e-5)}, v{s}"); round_bf16(a, s)
        a(f"v_sqrt_f32 v{s}, v{s}\ns_nop 0"); round_bf16(a, s)
        a(f"v_rcp_f32 v{s}, v{s}")
        round_bf16(a, ST + row)
    for row in range(2):
        b = XF + 8 * row
        for i in range(4):
            x0, x1 = b + 2 * i, b + 2 * i + 1
            a(f"v_sub_f32 v{x0}, v{x0}, v{ST+row}\nv_sub_f32 v{x1}, v{x1}, v{ST+row}")
            a(f"v_cvt_pk_bf16_f32 v{x1}, v{x0}, v{x1}")
            a(f"v_lshlrev_b32 v{x0}, 16, v{x1}\nv_and_b32 v{x1}, 0xffff0000, v{x1}")
            a(f"v_mul_f32 v{x0}, v{x0}, v{ST+4+row}\nv_mul_f32 v{x1}, v{x1}, v{ST+4+row}")
            a(f"v_cvt_pk_bf16_f32 v{XR+4*row+i}, v{x0}, v{x1}")
    a(f"ds_write_b128 v{ST+10}, v[{XR}:{XR+3}]\nds_write_b128 v{ST+10}, v[{XR+4}:{XR+7}] offset:{LNP}")
    if P["lnw"] >= 3: issue_w(1, nxt); nxt += 1
    a("s_waitcnt lgkmcnt(0)\ns_barrier")
    stamp("lnbar", True)
    HB = AF + 16
    a(f"v_bfe_u32 v{vT0}, v{vLANE}, 2, 2\nv_mul_u32_u24 v{vT0}, {LNP}, v{vT0}\nv_lshl_add_u32 v{vT0}, v{vG}, 5, v{vT0}")
    a(f"v_and_b32 v{vT1}, 3, v{vLANE}\nv_lshl_add_u32 v{vT0}, v{vT1}, 3, v{vT0}\nv_lshl_add_u32 v{vT0}, v{vWAVE}, 8, v{vT0}\nv_add_u32 v{vT0}, {RED}, v{vT0}")
    for it in range(2):
        for j in range(2):
            r = HB + 4 * it + 2 * j
            a(f"ds_read_b64_tr_b16 v[{r}:{r+1}], v{vT0} offset:{j*4*LNP + it*128}")
    for i in range(4): a(f"v_mov_b32 v{AF+48+i}, -1")
    a(f"s_mul_i32 s{sT1}, s{sDT}, 3\ns_add_u32 s{sT1}, s{sT1}, s{sWAVE}")
    a(f"s_cmp_eq_u32 s{sWAVE}, 3\ns_cselect_b32 s{sT1}, 32, s{sT1}\ns_cmp_ge_u32 s{sT1}, {32 if not P['nosent'] else 0}\ns_cbranch_scc1 L_sent_done")
    a(f"s_lshl_b32 s{sT0}, s{sFT}, 16\ns_lshl_b32 s{sT1}, s{sT1}, 10\ns_add_u32 s{sT0}, s{sT0}, s{sT1}\ns_add_u32 s{sT1}, s{sT0}, 32768")
    for k in range(2):
        a(f"buffer_store_dwordx4 v[{AF+48}:{AF+51}], v{vA16}, s[{sUst}:{sUst+3}], s{sT0 if k == 0 else sT1} offen {SC}")
    a("L_sent_done:")
    a(f"s_lshl_b32 s{sT0}, s2, 13\ns_lshl_b32 s{sT1}, s{sWAVE}, 11\ns_add_u32 s{sT0}, s{sT0}, s{sT1}")
    a("s_waitcnt lgkmcnt(0)")
    for it in range(2):
        r = HB + 4 * it
        if not P['noh']: a(f"buffer_store_dwordx4 v[{r}:{r+3}], v{vA16}, s[{sHst}:{sHst+3}], s{sT0} offen offset:{1024*it} {P['hsc']}")
    a(f"s_bfe_u32 s{sT0}, s2, 0x20002\ns_lshl_b32 s{sT0}, s{sT0}, 6\ns_lshr_b32 s{sT1}, s2, 4\ns_lshl_b32 s{sT1}, s{sT1}, 2\ns_add_u32 s{sT0}, s{sT0}, s{sT1}")
    a(f"s_and_b32 s{sT1}, s2, 3\ns_add_u32 s{sT0}, s{sT0}, s{sT1}\ns_mul_i32 s{sT0}, s{sT0}, {FS}\ns_add_u32 s{sT0}, s{sT0}, 4096\nv_mov_b32 v{vT1}, s{sT0}")
    a("s_waitcnt vmcnt(0)\ns_barrier")
    stamp("pubbar", True)
    a(f"s_cmp_lg_u32 s{sWAVE}, 0\ns_cbranch_scc1 L_nopub")
    a("s_mov_b64 exec, 1")
    a(f"buffer_store_dwordx2 v[{vEP}:{vEP+1}], v{vT1}, s[{sDBG}:{sDBG+3}], 0 offen {SC}")
    a("s_mov_b64 exec, -1")
    if P["flagwait"]: a("s_waitcnt vmcnt(0)")
    a("L_nopub:")

    NS1 = P["preh"] + 1
    def issue_h(j):
        for ab in range(3):
            r = AF + ((j % NS1) * 3 + ab) * 4
            a.vmem(f"buffer_load_dwordx4 v[{r}:{r+3}], v{vFLAG}, s[{sH}:{sH+3}], s{sAoff} offen offset:{256*ab} sc1", f"h{j}")
        a(f"s_add_u32 s{sAoff}, s{sAoff}, 131072\ns_cmp_ge_u32 s{sAoff}, s{sAend}\ns_cselect_b32 s{sAoff}, s{sAbase}, s{sAoff}")
    def mfma1(j, t):
        for ab in range(3):
            c = ACC + (t * 3 + ab) * 4; w = 16 * j + 4 * t; x = AF + ((j % NS1) * 3 + ab) * 4
            a(f"v_mfma_f32_16x16x32_bf16 v[{c}:{c+3}], a[{w}:{w+3}], v[{x}:{x+3}], v[{c}:{c+3}]")
    polled = False
    hn = 0
    for j in range(16):
        while nxt < 16 and nxt <= j + PW:
            if slot[0] >= NSLOT: a("s_waitcnt lgkmcnt(8)" if slot[0] - NSLOT < j - 1 + 1 and (slot[0] - NSLOT) <= j - 2 else "s_waitcnt lgkmcnt(0)")
            assert slot[0] - NSLOT <= j - 1
            issue_w(1, nxt); nxt += 1
            if nxt == 16 - P["pollahead"]:
                a(f"v_mul_u32_u24 v{vT0}, {FS}, v0\nv_add_u32 v{vT0}, 4096, v{vT0}")
                a.vmem(f"buffer_load_dwordx2 v[{vFL}:{vFL+1}], v{vT0}, s[{sDBG}:{sDBG+3}], 0 offen {SC}", "flag")
        if nxt == 16 and not polled:
            polled = True
            stamp("w1issued")
            a.wait("flag")
            a(f"s_mov_b32 s{sSPIN}, 20000")
            a("L_fchk:")
            a(f"v_cmp_ne_u64 vcc, v[{vEP}:{vEP+1}], v[{vFL}:{vFL+1}]\ns_cbranch_vccz L_fok")
            a(f"s_cmp_eq_u32 s{sSPIN}, 0\ns_cbranch_scc1 L_fok\ns_sub_u32 s{sSPIN}, s{sSPIN}, 1")
            a(f"s_sleep {P['fsleep']}\nbuffer_load_dwordx2 v[{vFL}:{vFL+1}], v{vT0}, s[{sDBG}:{sDBG+3}], 0 offen {SC}\ns_waitcnt vmcnt(0)\ns_branch L_fchk")
            a("L_fok:")
            stamp("flagok")
        elif polled and hn < P["preh"]:
            issue_h(hn); hn += 1
        a.wait(f"w1_{j}")
        if j % 2 == 0: stamp(f"w1_{j}")
        consume_w(1, j)
    while hn < P["preh"]:
        issue_h(hn); hn += 1
    a(f"s_and_b32 s{sT0}, s{sST}, 3\ns_mul_i32 s{sT0}, s{sT0}, {P['rot2'][1]}\ns_mul_i32 s{sT1}, s{sDT2}, {P['rot2'][0]}\ns_add_u32 s{sT0}, s{sT0}, s{sT1}\ns_and_b32 s{sT0}, s{sT0}, 7")
    a(f"s_mul_i32 s{sROT2}, s{sT0}, 11\ns_lshr_b32 s{sROT2}, s{sROT2}, 3")
    a(f"s_mul_i32 s{sWbase}, s{sWAVE}, {32*W2P}\ns_lshl_b32 s{sT1}, s{sST}, 7\ns_add_u32 s{sWbase}, s{sWbase}, s{sT1}")
    a(f"s_add_u32 s{sWend}, s{sWbase}, {11*128*W2P}")
    a(f"s_mul_i32 s{sT1}, s{sROT2}, {128*W2P}\ns_add_u32 s{sWoff}, s{sWbase}, s{sT1}")
    a("s_waitcnt lgkmcnt(0)")
    w2n = 0
    for j in range(16):
        a.wait(f"h{j}")
        if j % 4 == 0: stamp(f"h{j}")
        mfma1(j, 0)
        if hn < 16: issue_h(hn); hn += 1
        elif w2n < P["w2early"]: issue_w(2, w2n); w2n += 1
        for t in range(1, 4): mfma1(j, t)
    while w2n < P["w2early"]: issue_w(2, w2n); w2n += 1
    stamp("mfma1done")
    a("s_nop 7")
    for tau in range(1, 4):
        for ab in range(3):
            c = ACC + (tau * 3 + ab) * 4
            a(f"ds_write_b128 v{vRW1}, v[{c}:{c+3}] offset:{((tau-1)*3 + ab)*1024}")
    BI = AF
    a(f"v_lshlrev_b32 v{BI}, 16, v{vB1}\nv_and_b32 v{BI+1}, 0xffff0000, v{vB1}\nv_lshlrev_b32 v{BI+2}, 16, v{vB1+1}\nv_and_b32 v{BI+3}, 0xffff0000, v{vB1+1}")
    for ab in range(3):
        for r in range(4): a(f"v_add_f32 v{ACC+ab*4+r}, v{ACC+ab*4+r}, v{BI+r}")
    k0 = -2.0 * math.sqrt(2.0 / math.pi) * math.log2(math.e); k1 = k0 * 0.044715
    a(f"s_mov_b32 s{sT1}, {f32(k1)}\nv_mov_b32 v{BI+4}, {f32(k0)}")
    a(f"v_and_b32 v{BI+5}, 1, v{vG}\nv_lshrrev_b32 v{BI+6}, 1, v{vG}\nv_and_b32 v{BI+7}, 15, v{vLANE}")
    a(f"v_lshlrev_b32 v{vT0}, 10, v{BI+5}\nv_lshl_add_u32 v{vT0}, v{BI+6}, 8, v{vT0}\nv_lshl_add_u32 v{vT0}, v{BI+7}, 4, v{vT0}")
    a(f"s_lshl_b32 s{sT0}, s{sFT}, 1\ns_lshr_b32 s3, s{sWAVE}, 1\ns_add_u32 s{sT0}, s{sT0}, s3\ns_lshl_b32 s{sT0}, s{sT0}, 15")
    a(f"s_and_b32 s3, s{sWAVE}, 1\ns_lshl_b32 s3, s3, 9\ns_add_u32 s{sT0}, s{sT0}, s3\ns_mul_i32 s3, s{sDT}, 3072\ns_add_u32 s{sT0}, s{sT0}, s3")
    a("s_waitcnt lgkmcnt(0)\ns_barrier")
    stamp("red1bar")
    for tau in range(1, 4):
        for ab in range(3):
            c = ACC + (tau * 3 + ab) * 4
            a(f"ds_read_b128 v[{c}:{c+3}], v{vRR1+tau-1} offset:{((tau-1)*3 + ab)*1024}")
    for tau in range(1, 4):
        a(f"s_waitcnt lgkmcnt({9 - 3*tau})")
        for i in range(12): a(f"v_add_f32 v{ACC+i}, v{ACC+i}, v{ACC+tau*12+i}")
    T = ACC + 12
    for i in range(12): a(f"v_mul_f32 v{T+i}, v{ACC+i}, v{ACC+i}")
    for i in range(12): a(f"v_fma_f32 v{T+i}, v{T+i}, s{sT1}, v{BI+4}")
    for i in range(12): a(f"v_mul_f32 v{T+i}, v{T+i}, v{ACC+i}")
    for i in range(12): a(f"v_exp_f32 v{T+i}, v{T+i}")
    for i in range(12): a(f"v_add_f32 v{T+i}, 1.0, v{T+i}")
    for i in range(12): a(f"v_rcp_f32 v{T+i}, v{T+i}")
    for i in range(12): a(f"v_mul_f32 v{ACC+i}, v{ACC+i}, v{T+i}")
    for ab in range(3):
        for h in range(2):
            a(f"v_cvt_pk_bf16_f32 v{T+2*ab+h}, v{ACC+ab*4+2*h}, v{ACC+ab*4+2*h+1}")
    for i in range(6): a(f"v_min_u32 v{T+i}, -2, v{T+i}")
    a(f"v_mov_b32 v{T+6}, v{T+4}\nv_mov_b32 v{T+7}, v{T+5}\ns_nop 0")
    for p in range(2):
        for h in range(2): a(f"v_permlane16_swap_b32 v{T+4*p+h}, v{T+4*p+2+h}")
    a.vmem(f"buffer_store_dwordx4 v[{T}:{T+3}], v{vT0}, s[{sUst}:{sUst+3}], s{sT0} offen {SC}", "ust")
    a(f"s_cmp_eq_u32 s{sDT}, 10\ns_cbranch_scc1 L_ust_done")
    a(f"v_cmp_eq_u32 vcc, 0, v{BI+5}\ns_mov_b64 exec, vcc")
    a(f"buffer_store_dwordx4 v[{T+4}:{T+7}], v{vT0}, s[{sUst}:{sUst+3}], s{sT0} offen offset:2048 {SC}")
    a("s_mov_b64 exec, -1")
    a("L_ust_done:")
    stamp("ustored")
    a(f"s_lshl_b32 s{sAbase}, s{sWAVE}, 15\ns_lshl_b32 s{sT1}, s{sDT2}, 12\ns_add_u32 s{sAbase}, s{sAbase}, s{sT1}")
    a(f"s_add_u32 s{sAend}, s{sAbase}, {11*131072}\ns_lshl_b32 s{sT1}, s{sROT2}, 17\ns_add_u32 s{sAoff}, s{sAbase}, s{sT1}")
    a("s_nop 0")
    for i in range(64): a(f"v_mov_b32 v{ACC+i}, 0")
    PU = P["preu"]; NS2 = PU + 1
    assert NS2 <= 6 and NS2 * 16 <= 156
    def uloads(j, track=True):
        for ab in range(4):
            r = AF + ((j % NS2) * 4 + ab) * 4
            s = f"buffer_load_dwordx4 v[{r}:{r+3}], v{vA16}, s[{sU}:{sU+3}], s{sUo + j % NS2} offen offset:{1024*ab} sc1"
            if track: a.vmem(s, f"u{j}")
            else: a(s)
    def issue_u(j):
        a(f"s_mov_b32 s{sUo + j % NS2}, s{sAoff}")
        uloads(j)
        a(f"s_add_u32 s{sAoff}, s{sAoff}, 131072\ns_cmp_ge_u32 s{sAoff}, s{sAend}\ns_cselect_b32 s{sAoff}, s{sAbase}, s{sAoff}")
    un = 0
    base2 = slot[0] - w2n
    for j in range(11):
        while w2n < 11 and w2n <= j + PW:
            prev = slot[0] - NSLOT - base2
            if prev >= 0:
                assert prev <= j - 1
                a("s_waitcnt lgkmcnt(8)" if prev <= j - 2 else "s_waitcnt lgkmcnt(0)")
            issue_w(2, w2n); w2n += 1
        if w2n == 11 and j + PW >= 11 and un < PU:
            issue_u(un); un += 1
        a.wait(f"w2_{j}")
        if j % 3 == 0: stamp(f"w2_{j}")
        consume_w(2, j)
    while un < PU: issue_u(un); un += 1
    stamp("w2done")
    a(f"s_waitcnt lgkmcnt(0)\ns_mov_b32 s{sSPIN}, 20000")
    for j in range(11):
        a.wait(f"u{j}")
        a(f"L_uchk{j}:")
        b = AF + (j % NS2) * 16
        a(f"v_max3_u32 v{vT0}, v{b}, v{b+1}, v{b+2}\nv_max3_u32 v{vT1}, v{b+3}, v{b+4}, v{b+5}")
        a(f"v_max3_u32 v{vT0}, v{vT0}, v{b+6}, v{b+7}\nv_max3_u32 v{vT1}, v{vT1}, v{b+8}, v{b+9}")
        a(f"v_max3_u32 v{vT0}, v{vT0}, v{b+10}, v{b+11}\nv_max3_u32 v{vT1}, v{vT1}, v{b+12}, v{b+13}")
        a(f"v_max3_u32 v{vT0}, v{vT0}, v{b+14}, v{b+15}\nv_max_u32 v{vT0}, v{vT0}, v{vT1}")
        a(f"v_cmp_eq_u32 vcc, -1, v{vT0}\ns_cbranch_vccnz L_uretry{j}")
        a(f"L_uok{j}:")
        if j % 3 == 0: stamp(f"u{j}")
        for t in range(4):
            for ab in range(4):
                c = ACC + (t * 4 + ab) * 4; w = 16 * j + 4 * t; x = b + ab * 4
                a(f"v_mfma_f32_16x16x32_bf16 v[{c}:{c+3}], v[{x}:{x+3}], a[{w}:{w+3}], v[{c}:{c+3}]")
            if t == 0 and un < 11: issue_u(un); un += 1
    stamp("mfma2done")
    a("s_nop 7")
    for tau in range(1, 4):
        for ab in range(4):
            c = ACC + (tau * 4 + ab) * 4
            a(f"ds_write_b128 v{vRW2}, v[{c}:{c+3}] offset:{((tau-1)*4 + ab)*1024}")
    a(f"v_lshlrev_b32 v{vB2}, 16, v{vB2}")
    for i in range(16): a(f"v_add_f32 v{ACC+i}, v{ACC+i}, v{vB2}")
    a(f"v_and_b32 v{BI+5}, 1, v{vG}\nv_lshrrev_b32 v{BI+6}, 1, v{vG}\nv_and_b32 v{BI+7}, 15, v{vLANE}")
    a(f"v_lshlrev_b32 v{vT0}, 10, v{BI+7}\nv_lshl_add_u32 v{vT0}, v{BI+5}, 5, v{vT0}\nv_lshl_add_u32 v{vT0}, v{BI+6}, 4, v{vT0}")
    a(f"s_lshl_b32 s{sT0}, s{sST}, 16\ns_lshl_b32 s3, s{sWAVE}, 14\ns_add_u32 s{sT0}, s{sT0}, s3\ns_lshl_b32 s3, s{sDT2}, 7\ns_add_u32 s{sT0}, s{sT0}, s3")
    a("s_waitcnt lgkmcnt(0)\ns_barrier")
    stamp("red2bar")
    for tau in range(1, 4):
        for ab in range(4):
            c = ACC + (tau * 4 + ab) * 4
            a(f"ds_read_b128 v[{c}:{c+3}], v{vRR2+tau-1} offset:{((tau-1)*4 + ab)*1024}")
    for tau in range(1, 4):
        a(f"s_waitcnt lgkmcnt({12 - 4*tau})")
        for i in range(16): a(f"v_add_f32 v{ACC+i}, v{ACC+i}, v{ACC+tau*16+i}")
    T = ACC + 16
    for ab in range(4):
        for h in range(2):
            a(f"v_cvt_pk_bf16_f32 v{T+2*ab+h}, v{ACC+ab*4+2*h}, v{ACC+ab*4+2*h+1}")
    a("s_nop 1")
    for p in range(2):
        for h in range(2): a(f"v_permlane16_swap_b32 v{T+4*p+h}, v{T+4*p+2+h}")
    ofl = P.get("outflags", "")
    a(f"buffer_store_dwordx4 v[{T}:{T+3}], v{vT0}, s[{sOUT}:{sOUT+3}], s{sT0} offen {ofl}")
    a(f"buffer_store_dwordx4 v[{T+4}:{T+7}], v{vT0}, s[{sOUT}:{sOUT+3}], s{sT0} offen offset:64 {ofl}")
    a(f"s_or_b32 s3, s2, s{sWAVE}\ns_cmp_lg_u32 s3, 0\ns_cbranch_scc1 L_nobump")
    a(f"v_mov_b32 v{vT1}, 0\ns_mov_b64 exec, 1\nbuffer_store_dwordx2 v[{vEP}:{vEP+1}], v{vT1}, s[{sDBG}:{sDBG+3}], 0 offen {SC}")
    a("L_nobump:")
    if DIAG:
        stamp("stissued")
        a("s_mov_b64 exec, -1\ns_waitcnt vmcnt(0)")
        stamp("end", True)
        a(f"s_sub_u32 s4, 20000, s{sSPIN}\nv_writelane_b32 v{vST}, s4, 63")
        srd(a, 56, 18, 4 << 20, STAMP_OFF)
        a(f"v_lshlrev_b32 v1, 2, v0\ns_lshl_b32 s3, s2, 10")
        a(f"buffer_store_dword v{vST}, v1, s[56:59], s3 offen")
    a("L_end:\ns_endpgm")
    for j in range(11):
        a(f"L_uretry{j}:")
        a(f"s_cmp_eq_u32 s{sSPIN}, 0\ns_cbranch_scc1 L_uok{j}\ns_sub_u32 s{sSPIN}, s{sSPIN}, 1")
        uloads(j, track=False)
        a(f"s_waitcnt vmcnt(0)\ns_branch L_uchk{j}")
    a("L_code_end:")
    hdr = open("standalone__mixer_token_mlp__prompt.s.ref").read().split("; Override")[0]
    if DIAG: hdr += "; STAMPS " + " ".join(names) + "\n"
    hdr += f"; @launch grid=(256,1,1) block=(256,1,1) lds={LDS}\n"
    d = f""".section .rodata,"a"
.p2align 6
.amdhsa_kernel {NAME}
  .amdhsa_next_free_vgpr 512
  .amdhsa_next_free_sgpr 102
  .amdhsa_accum_offset 256
  .amdhsa_group_segment_fixed_size 0
  .amdhsa_kernarg_size 64
  .amdhsa_user_sgpr_count 2
  .amdhsa_user_sgpr_kernarg_segment_ptr 1
  .amdhsa_system_sgpr_workgroup_id_x 1
.end_amdhsa_kernel
"""
    return hdr + '.amdgcn_target "amdgcn-amd-amdhsa--gfx950"\n.text\n' + a.text() + d

DEF = dict(diag=False, flagwait=False, lnw=2, nosent=False, noh=False, hsc='sc1', fstride=64, sc='sc1', fsleep=8, ntx='nt', ntw=('nt',''), rotf=5, cpf=True, pre0=2, prew=2, preh=3, preu=3, w2early=3, pollahead=2,
           rot2=(1, 2))
if __name__ == "__main__":
    P = dict(DEF)
    for arg in sys.argv[2:]:
        k, v = arg.split("=")
        P[k] = eval(v)
    open(sys.argv[1], "w").write(gen(P))
```

```python
import sys, math, struct

S, D, F = 2048, 512, 1376
W1P, W2P = F * 2, S * 2
X_BYTES, W1_BYTES, W2_BYTES = S * D * 2, S * F * 2, F * S * 2
H_OFF, H_BYTES = 0, S * D * 2
U_OFF, U_BYTES = 2 << 20, 43 * 32 * 1024
EP_OFF = (4 << 20) - 4096
FL_OFF = (4 << 20) - 65536
PX_OFF, PX_BYTES = 4 << 20, 256 * 16384
STAMP_OFF = 16 << 20
NAME = "standalone__mixer_token_mlp__prompt_kernel"
SPINMAX = 20000

def f32(x): return "0x%08x" % struct.unpack("<I", struct.pack("<f", x))[0]

class Asm:
    def __init__(self): self.l = []; self.vm = []; self.ds = []
    def __call__(self, s):
        for line in s.strip("\n").split("\n"):
            line = line.strip()
            if line: self.l.append(line if line.endswith(":") else "    " + line)
    def vmem(self, s, label): self(s); self.vm.append(label)
    def lds(self, s, label): self(s); self.ds.append(label)
    def wait(self, label):
        idx = max(i for i, l in enumerate(self.vm) if l == label)
        n = len(self.vm) - 1 - idx
        assert n <= 63, (label, n)
        self(f"s_waitcnt vmcnt({n})")
    def lwait(self, label):
        c = [i for i, l in enumerate(self.ds) if l == label]
        if not c: return
        n = min(15, len(self.ds) - 1 - max(c))
        self(f"s_waitcnt lgkmcnt({n})")
        self.ds = self.ds[len(self.ds) - n:] if n else []
    def ldrain(self): self("s_waitcnt lgkmcnt(0)"); self.ds = []
    def text(self): return "\n".join(self.l) + "\n"

def srd(a, d, b, nbytes, off=0):
    if off: a(f"s_add_u32 s{d}, s{b}, {off}\ns_addc_u32 s{d+1}, s{b+1}, 0")
    else:   a(f"s_mov_b32 s{d}, s{b}\ns_mov_b32 s{d+1}, s{b+1}")
    a(f"s_mov_b32 s{d+2}, {nbytes}\ns_mov_b32 s{d+3}, 0x20000")

def wave_allreduce(a, regs, tmps):
    for ctrl in ("quad_perm:[1,0,3,2]", "quad_perm:[2,3,0,1]", "row_half_mirror", "row_mirror"):
        a("s_nop 0")
        for r in regs: a(f"v_add_f32_dpp v{r}, v{r}, v{r} {ctrl} row_mask:0xf bank_mask:0xf")
    for op in ("v_permlane16_swap_b32", "v_permlane32_swap_b32"):
        for r, t in zip(regs, tmps): a(f"v_mov_b32 v{t}, v{r}")
        a("s_nop 0")
        for r, t in zip(regs, tmps): a(f"{op} v{r}, v{t}")
        for r, t in zip(regs, tmps): a(f"v_add_f32 v{r}, v{r}, v{t}")

def gen(P):
    DIAG = P["diag"]
    a = Asm()
    names = []; pend = [None]; vST = 255
    def flush_stamp():
        if pend[0] is not None:
            a(f"v_writelane_b32 v{vST}, s{76 + 2*(pend[0] & 1)}, {pend[0]}"); pend[0] = None
    def stamp(name, sync=False):
        if not DIAG: return
        n = len(names); names.append(str(name)); assert n < 62
        if n: flush_stamp()
        a(f"s_memrealtime s[{76+2*(n&1)}:{77+2*(n&1)}]"); pend[0] = n
        if n == 0: a(f"v_mov_b32 v{vST}, 0")
        if sync: a("s_waitcnt lgkmcnt(0)"); flush_stamp()
    sX, sW1, sW2, sH, sU, sOUT, sFL, sB1, sB2, sC = 20, 24, 28, 32, 36, 40, 44, 48, 52, 56
    sUst, sPX = 4, 8
    sWAVE, sFT, sDT, sST, sDT2, sT0, sT1 = 60, 61, 62, 63, 64, 65, 66
    sWoff, sWbase, sWend, sAoff, sAbase, sAend, sRING = 67, 68, 69, 70, 71, 72, 73
    sROT, sSPIN = 74, 75
    sUo = 80
    sIDX, sK, sTAG, sWoff2, sFB0, sUso = 101, 96, 97, 98, 99, 100
    sVoff, sVbase, sVend, sR8 = 56, 57, 58, 59
    sFO = 20
    FST = P['fstride']; FLS = 32 * FST; vFL = 250; vFO = 251
    AREA = 40960; NS_W1 = 6; NS_W2 = 5; W2R = 18432; LNO = 36864; LNP = 1056; LDS = 4 * AREA
    vLANE, vWAVE, vG = 1, 2, 3
    vD1, vD2, vTR1, vTR2, vHO = 4, 8, 12, 18, 22
    vA16, vRW, vT0, vT1 = 7, 26, 30, 31
    vRR = 27
    ACC, AF = 32, 128
    vB1, vB2, vUA, vUB = 240, 246, 248, 249
    SC = "sc1"
    def pk(op, d, x, y, z=None, bc1=False, bc2=False, neg1=False):
        s = f"v_pk_{op}_f32 v[{d}:{d+1}], v[{x}:{x+1}], v[{y}:{y+1}]" + (f", v[{z}:{z+1}]" if z is not None else "")
        hi = [1] * (3 if z is not None else 2)
        if bc1: hi[1] = 0
        if bc2: hi[2] = 0
        if bc1 or bc2: s += " op_sel_hi:[" + ",".join(map(str, hi)) + "]"
        if neg1: s += " neg_lo:[0,1] neg_hi:[0,1]"
        a(s)

    a.l.append(f".globl {NAME}\n.p2align 8\n.type {NAME},@function\n{NAME}:")
    stamp("start")
    a("s_load_dwordx16 s[4:19], s[0:1], 0")
    a("s_cmp_ge_u32 s2, 256\ns_cbranch_scc1 L_end")
    a(f"s_getpc_b64 s[{sC}:{sC+1}]\nL_pc:")
    a(f"v_lshlrev_b32 v{vA16}, 4, v0\ns_lshr_b32 s{sIDX}, s2, 3\ns_lshl_b32 s{sT1}, s{sIDX}, 12")
    a(f"s_mov_b32 s{sC+2}, L_code_end - L_pc\ns_mov_b32 s{sC+3}, 0x20000")
    a.vmem(f"buffer_load_dwordx4 v[{AF+8}:{AF+11}], v{vA16}, s[{sC}:{sC+3}], s{sT1} offen", "code")
    a(f"v_and_b32 v{vLANE}, 63, v0\nv_lshrrev_b32 v{vWAVE}, 6, v0\nv_lshlrev_b32 v{vA16}, 4, v{vLANE}")
    a(f"v_readfirstlane_b32 s{sWAVE}, v{vWAVE}")
    a(f"s_bfe_u32 s{sK}, s2, 0x10002\ns_and_b32 s{sFT}, s2, 3\ns_lshl_b32 s{sFT}, s{sFT}, 2\ns_lshr_b32 s{sT0}, s{sIDX}, 3\ns_add_u32 s{sFT}, s{sFT}, s{sT0}\ns_and_b32 s{sDT}, s{sIDX}, 7")
    a(f"s_mul_i32 s{sROT}, s{sT0}, {P['rotf']}\ns_add_u32 s{sROT}, s{sROT}, s{sDT}\ns_and_b32 s{sROT}, s{sROT}, 7")
    a(f"s_min_u32 s{sT1}, s{sFT}, 14\ns_mul_i32 s{sT1}, s{sT1}, 192")
    a(f"s_lshl_b32 s{sT0}, s{sK}, 5\ns_add_u32 s{sT0}, s{sT0}, s{sWAVE}")
    a(f"s_mul_i32 s{sWbase}, s{sT0}, {32*W1P}\ns_add_u32 s{sWbase}, s{sWbase}, s{sT1}\ns_add_u32 s{sWend}, s{sWbase}, {8*128*W1P}")
    a(f"s_mul_i32 s{sT1}, s{sROT}, {128*W1P}\ns_add_u32 s{sWoff}, s{sWbase}, s{sT1}")
    a(f"s_lshl_b32 s{sAbase}, s{sT0}, 15\ns_lshl_b32 s{sT1}, s{sDT}, 10\ns_add_u32 s{sAbase}, s{sAbase}, s{sT1}")
    a(f"s_mul_i32 s{sRING}, s{sWAVE}, {AREA}\ns_lshl_b32 s{sR8}, s{sK}, 5\ns_add_u32 s{sR8}, s{sR8}, s{sIDX}\ns_lshl_b32 s{sR8}, s{sR8}, 2\ns_and_b32 s3, s2, 3\ns_add_u32 s{sR8}, s{sR8}, s3\ns_lshl_b32 s3, s{sR8}, 13")
    for q in range(3):
        if q: a(f"v_add_u32 v{vT0}, {64*q}, v{vLANE}")
        lam = vT0 if q else vLANE
        a(f"v_mul_u32_u24 v{vT1}, 5462, v{lam}\nv_lshrrev_b32 v{vT1}, 16, v{vT1}")
        a(f"v_mul_u32_u24 v{vG}, 12, v{vT1}\nv_sub_u32 v{vG}, v{lam}, v{vG}")
        if q: a(f"v_lshrrev_b32 v{vRW}, 2, v{vT1}\nv_and_b32 v{vRW}, 2, v{vRW}\nv_xor_b32 v{vG}, v{vG}, v{vRW}")
        a(f"v_mul_u32_u24 v{vT1}, {W1P}, v{vT1}\nv_lshl_add_u32 v{vD1+q}, v{vG}, 4, v{vT1}")
        if q: a(f"v_subrev_u32 v{vD1+q}, {1024*q}, v{vD1+q}")
    a(f"v_lshl_add_u32 v{vT0}, v{vWAVE}, 11, v{vA16}")
    a(f"s_mov_b32 s{sX+2}, {X_BYTES}\ns_mov_b32 s{sX+3}, 0x20000\ns_mov_b32 s{sW1+2}, {W1_BYTES}\ns_mov_b32 s{sW1+3}, 0x20000")
    a("s_waitcnt lgkmcnt(0)")
    a(f"s_mov_b32 s{sX}, s4\ns_mov_b32 s{sX+1}, s5\ns_mov_b32 s{sW1}, s6\ns_mov_b32 s{sW1+1}, s7")
    a.vmem(f"buffer_load_dwordx4 v[{AF}:{AF+3}], v{vT0}, s[{sX}:{sX+3}], s3 offen nt", "x")
    a.vmem(f"buffer_load_dwordx4 v[{AF+4}:{AF+7}], v{vT0}, s[{sX}:{sX+3}], s3 offen offset:1024 nt", "x")
    a(f"s_mov_b32 s{sT1}, {EP_OFF}\ns_load_dword s{sTAG}, s[18:19], s{sT1}")
    if P["xbar"]: a("s_barrier")

    def w1_parts(j):
        sl = j % NS_W1
        def mk(q):
            def f():
                if q == 0:
                    if j >= NS_W1: a.lwait(f"t1_{j-NS_W1}")
                    a(f"s_add_u32 m0, s{sRING}, {sl*6144}\ns_add_u32 s{sWoff2}, s{sWoff}, {16*W1P}")
                if q == 3: a(f"s_add_u32 m0, s{sRING}, {sl*6144 + 3072}\ns_nop 0")
                so = sWoff if q < 3 else sWoff2
                a.vmem(f"buffer_load_dwordx4 v{vD1+q%3}, s[{sW1}:{sW1+3}], s{so} offen offset:{1024*(q%3)} lds", f"w1_{j}")
                if q == 5: a(f"s_add_u32 s{sWoff}, s{sWoff}, {128*W1P}\ns_cmp_ge_u32 s{sWoff}, s{sWend}\ns_cselect_b32 s{sWoff}, s{sWbase}, s{sWoff}")
            return f
        return [mk(q) for q in range(6)]
    def cw1(j):
        a.wait(f"w1_{j}")
        stamp(f"w1_{j}")
        for sg in range(6):
            for jj in range(2):
                r = 24 * j + 4 * sg + 2 * jj
                a.lds(f"ds_read_b64_tr_b16 a[{r}:{r+1}], v{vTR1+sg} offset:{(j % NS_W1)*6144 + jj*768}", f"t1_{j}")
    def w2_parts(j):
        sl = j % NS_W2
        def mk(q):
            def f():
                if q == 0:
                    if j >= NS_W2: a.lwait(f"t2_{j-NS_W2}")
                    else:
                        for jj in range(8): a.lwait(f"t1_{jj}")
                    a(f"s_add_u32 m0, s{sRING}, {W2R + sl*4096}\ns_nop 0")
                a.vmem(f"buffer_load_dwordx4 v{vD2+q}, s[{sW2}:{sW2+3}], s{sVoff} offen offset:{1024*q} lds", f"w2_{j}")
                if q == 3: a(f"s_add_u32 s{sVoff}, s{sVoff}, {128*W2P}\ns_cmp_ge_u32 s{sVoff}, s{sVend}\ns_cselect_b32 s{sVoff}, s{sVbase}, s{sVoff}")
            return f
        return [mk(q) for q in range(4)]
    def w2base(j): return 192 + 16 * j if j < 4 else 16 * (j - 4)
    def cw2(j):
        a.wait(f"w2_{j}")
        if j % 2 == 0: stamp(f"w2_{j}")
        for t in range(4):
            for jj in range(2):
                r = w2base(j) + 4 * t + 2 * jj
                a.lds(f"ds_read_b64_tr_b16 a[{r}:{r+1}], v{vTR2+t} offset:{(j % NS_W2)*4096 + jj*512}", f"t2_{j}")
    NSH = 7
    def h_parts(j):
        def mk(tau):
            def f():
                r = AF + (j % NSH) * 16 + tau * 4
                a.vmem(f"buffer_load_dwordx4 v[{r}:{r+3}], v{vHO+tau}, s[{sH}:{sH+3}], s{sAoff} offen sc1", f"h{j}")
                if tau == 3: a(f"s_add_u32 s{sAoff}, s{sAoff}, 131072\ns_cmp_ge_u32 s{sAoff}, s{sAend}\ns_cselect_b32 s{sAoff}, s{sAbase}, s{sAoff}")
            return f
        return [mk(t) for t in range(4)]
    def run(parts):
        for f in parts: f()
    def parts_of(tok):
        kind, j = tok
        if kind == "w1": return w1_parts(j)
        if kind == "w2": return w2_parts(j)
        if kind == "h": return h_parts(j)
        if kind == "cw1": return [lambda: cw1(j)]
        if kind == "cw2": return [lambda: cw2(j)]
        raise ValueError(tok)
    def acc1(sg, tau): return ACC + (sg * 4 + tau) * 4
    def mf1(j, sg, tau):
        c = acc1(sg, tau); w = 24 * j + 4 * sg; x = AF + (j % NSH) * 16 + tau * 4
        a(f"v_mfma_f32_16x16x32_bf16 v[{c}:{c+3}], a[{w}:{w+3}], v[{x}:{x+3}], v[{c}:{c+3}]")
    deferred = []
    def m1(j, toks, full):
        a.lwait(f"t1_{j}")
        a.wait(f"h{j}")
        stamp(f"h{j}")
        parts = [p for t in toks for p in parts_of(t)]
        order = [(sg, tau) for tau in (1, 2, 3, 0) for sg in (3, 4, 5)]
        own = [(sg, tau) for tau in (1, 2, 3, 0) for sg in (0, 1, 2)]
        if full: order += own
        else: deferred.extend((j, sg, tau) for sg, tau in own)
        gap = max(1, len(order) // max(1, len(parts)))
        for n, (sg, tau) in enumerate(order):
            mf1(j, sg, tau)
            if parts and n % gap == 0: parts.pop(0)()
        for f in parts: f()
    def dmf(n, toks=()):
        parts = [p for t in toks for p in (parts_of(t) if isinstance(t, tuple) else [t])]
        n = min(n, len(deferred))
        gap = max(1, n // max(1, len(parts)))
        for i in range(n):
            mf1(*deferred.pop(0))
            if parts and i % gap == gap - 1: parts.pop(0)()
        for f in parts: f()

    stamp("iss0")
    run(w1_parts(0))
    if P["pre0"] > 1: run(w1_parts(1))
    a(f"s_and_b32 s{sT0}, s2, 7")
    if P["map2"] == 1:
        a(f"s_lshl_b32 s{sST}, s{sT0}, 2\ns_lshr_b32 s{sDT2}, s{sIDX}, 3\ns_add_u32 s{sST}, s{sST}, s{sDT2}\ns_and_b32 s{sDT2}, s{sIDX}, 7")
    else:
        a(f"s_lshr_b32 s{sST}, s{sT0}, 1\ns_lshl_b32 s{sST}, s{sST}, 3\ns_lshr_b32 s{sDT2}, s{sIDX}, 2\ns_add_u32 s{sST}, s{sST}, s{sDT2}")
        a(f"s_and_b32 s{sDT2}, s{sT0}, 1\ns_lshl_b32 s{sDT2}, s{sDT2}, 2\ns_and_b32 s{sT1}, s{sIDX}, 3\ns_add_u32 s{sDT2}, s{sDT2}, s{sT1}")
    srd(a, sW2, 10, W2_BYTES); srd(a, sH, 18, H_BYTES, H_OFF); srd(a, sU, 18, U_BYTES, U_OFF)
    srd(a, sFL, 18, 65536, FL_OFF); srd(a, sOUT, 14, X_BYTES); srd(a, sB1, 8, F * 2); srd(a, sB2, 12, S * 2)
    srd(a, sUst, 18, U_BYTES, U_OFF); srd(a, sPX, 18, PX_BYTES, PX_OFF)
    a(f"s_add_u32 s{sAend}, s{sAbase}, {8*131072}\ns_lshl_b32 s{sT1}, s{sROT}, 17\ns_add_u32 s{sAoff}, s{sAbase}, s{sT1}")
    a(f"s_mul_i32 s{sFB0}, s{sFT}, 6\ns_mul_i32 s{sT1}, s{sK}, 3\ns_add_u32 s{sFB0}, s{sFB0}, s{sT1}")
    a(f"s_lshl_b32 s{sUso}, s{sDT}, 2\ns_add_u32 s{sUso}, s{sUso}, s{sWAVE}\ns_lshl_b32 s{sUso}, s{sUso}, 10")
    LT = AF + 44; LW = AF + 46; SN = AF + 48
    a(f"v_lshrrev_b32 v{vG}, 4, v{vLANE}\nv_bfe_u32 v{vT0}, v{vLANE}, 2, 2\nv_and_b32 v{vT1}, 3, v{vLANE}")
    a(f"v_lshrrev_b32 v{LT}, 1, v{vT0}\nv_mul_u32_u24 v{LT}, {AREA}, v{LT}\nv_and_b32 v{LT+1}, 1, v{vT0}\nv_mul_u32_u24 v{LT+1}, {LNP}, v{LT+1}\nv_add_u32 v{LT}, v{LT}, v{LT+1}")
    a(f"v_lshl_add_u32 v{LT}, v{vG}, 5, v{LT}\nv_lshl_add_u32 v{LT}, v{vT1}, 3, v{LT}\nv_lshl_add_u32 v{LT}, v{vWAVE}, 8, v{LT}\nv_add_u32 v{LT+1}, {2*AREA}, v{LT}")
    a(f"v_add_u32 v{vRW}, s{sRING}, v{vA16}")
    a(f"v_and_b32 v{vUB}, 15, v{vLANE}\nv_lshlrev_b32 v{vUB}, 4, v{vUB}\nv_lshrrev_b32 v{vUA}, 1, v{vG}\nv_lshl_add_u32 v{vUB}, v{vUA}, 8, v{vUB}")
    a(f"v_and_b32 v{vRR}, 1, v{vG}\nv_add_u32 v{vRR+1}, s{sFB0}, v{vRR}\nv_lshrrev_b32 v{vRR+2}, 1, v{vRR+1}\nv_and_b32 v{vRR+1}, 1, v{vRR+1}")
    a(f"v_lshl_add_u32 v{vUA}, v{vRR+2}, 15, v{vUB}\nv_lshl_add_u32 v{vUA}, v{vRR+1}, 9, v{vUA}")
    a(f"v_lshl_add_u32 v{vUB}, v{vRR}, 30, v{vUA}\nv_add_u32 v{vUB}, 32768, v{vUB}")
    for i in range(4): a(f"v_mov_b32 v{SN+i}, -1")
    XR = AF; XF = AF + 16; ST = AF + 32

    def setup2():
        a(f"v_bfe_u32 v{vT0}, v{vLANE}, 2, 2\nv_and_b32 v{vT1}, 3, v{vLANE}")
        X0, X1 = AF + 52, AF + 53
        a(f"v_lshl_add_u32 v{X0}, v{vG}, 3, v{vT0}\nv_mul_u32_u24 v{X0}, 192, v{X0}\nv_lshl_add_u32 v{X0}, v{vT1}, 3, v{X0}\nv_add_u32 v{X0}, s{sRING}, v{X0}\nv_and_b32 v{X1}, 1, v{vG}")
        a(f"s_mul_i32 s{sT0}, s{sK}, 3\ns_sub_u32 s{sT1}, 3, s{sT0}")
        for sg in range(6):
            a(f"s_add_u32 s3, s{sT0 if sg < 3 else sT1}, {sg % 3}\nv_xor_b32 v{vTR1+sg}, s3, v{X1}\nv_lshl_add_u32 v{vTR1+sg}, v{vTR1+sg}, 5, v{X0}")
    def setup3():
        X0 = AF + 52
        a(f"v_bfe_u32 v{vT0}, v{vLANE}, 2, 2\nv_and_b32 v{vT1}, 3, v{vLANE}")
        a(f"v_lshl_add_u32 v{X0}, v{vG}, 3, v{vT0}\nv_lshlrev_b32 v{X0}, 7, v{X0}\nv_lshl_add_u32 v{X0}, v{vT1}, 3, v{X0}\nv_add_u32 v{X0}, s{sRING}, v{X0}\nv_add_u32 v{X0}, {W2R}, v{X0}")
        a(f"v_lshrrev_b32 v{vT0}, 1, v{vT0}\nv_and_b32 v{vT1}, 1, v{vG}\nv_lshl_or_b32 v{vT0}, v{vT1}, 1, v{vT0}\nv_xor_b32 v{vT0}, v{vT0}, v{vWAVE}")
        for t in range(4): a(f"v_xor_b32 v{vT1}, {t}, v{vT0}\nv_lshl_add_u32 v{vTR2+t}, v{vT1}, 5, v{X0}")
        a(f"v_and_b32 v{vT1}, 15, v{vLANE}\nv_lshlrev_b32 v{vT1}, 4, v{vT1}\nv_lshl_add_u32 v{X0}, v{vG}, 13, v{vT1}")
        for tau in range(4):
            a(f"v_xor_b32 v{vT1}, {tau}, v{vWAVE}\nv_lshl_add_u32 v{vHO+tau}, v{vT1}, 8, v{X0}")
            if tau: a(f"v_mul_u32_u24 v{vT1}, {AREA}, v{vT1}\nv_add_u32 v{vRR+tau-1}, v{vT1}, v{vA16}")
        a(f"v_lshrrev_b32 v{vT0}, 3, v{vLANE}\nv_and_b32 v{vT1}, 7, v{vLANE}\nv_bfe_u32 v{X0}, v{vLANE}, 4, 1\nv_lshlrev_b32 v{X0}, 1, v{X0}\nv_xor_b32 v{vT1}, v{vT1}, v{X0}")
        a(f"v_lshlrev_b32 v{vT0}, 12, v{vT0}\nv_xor_b32 v{X0}, 4, v{vT1}")
        a(f"v_lshl_add_u32 v{vD2}, v{vT1}, 4, v{vT0}\nv_lshl_add_u32 v{vD2+1}, v{X0}, 4, v{vT0}")
        a(f"v_add_u32 v{vD2+2}, {16*W2P - 2048}, v{vD2}\nv_add_u32 v{vD2+3}, {24*W2P - 3072}, v{vD2+1}\nv_add_u32 v{vD2+1}, {8*W2P - 1024}, v{vD2+1}")
        a(f"s_mul_i32 s{sT0}, s{sST}, {P['rot2'][1]}\ns_mul_i32 s{sT1}, s{sDT2}, {P['rot2'][0]}\ns_add_u32 s{sT0}, s{sT0}, s{sT1}\ns_and_b32 s{sT0}, s{sT0}, 7")
        a(f"s_mul_i32 s{sROT}, s{sT0}, 11\ns_lshr_b32 s{sROT}, s{sROT}, 3")
        a(f"s_mul_i32 s{sVbase}, s{sWAVE}, {32*W2P}\ns_lshl_b32 s{sT1}, s{sST}, 7\ns_add_u32 s{sVbase}, s{sVbase}, s{sT1}")
        a(f"s_add_u32 s{sVend}, s{sVbase}, {11*128*W2P}\ns_mul_i32 s{sT1}, s{sROT}, {128*W2P}\ns_add_u32 s{sVoff}, s{sVbase}, s{sT1}")
    def zero1():
        for i in range(0, 96, 2): a(f"v_mov_b64 v[{ACC+i}:{ACC+i+1}], 0")
    def ln():
        a.wait("x")
        stamp("xarr")
        for row in range(2):
            for i in range(4):
                src = XR + 4 * row + i; dst = XF + 8 * row + 2 * i
                a(f"v_lshlrev_b32 v{dst}, 16, v{src}\nv_and_b32 v{dst+1}, 0xffff0000, v{src}")
        for row in range(2): pk("add", ST + 2 * row, XF + 8 * row, XF + 8 * row + 2)
        for row in range(2): pk("add", ST + 4 + 2 * row, XF + 8 * row + 4, XF + 8 * row + 6)
        for row in range(2): pk("add", ST + 2 * row, ST + 2 * row, ST + 4 + 2 * row)
        for row in range(2): a(f"v_add_f32 v{ST+2*row}, v{ST+2*row}, v{ST+2*row+1}")
        wave_allreduce(a, [ST, ST + 2], [ST + 1, ST + 3])
        for row in range(2): a(f"v_mul_f32 v{ST+2*row}, {f32(1.0/D)}, v{ST+2*row}")
        for i in range(4):
            for row in range(2): pk("add", XF + 8 * row + 2 * i, XF + 8 * row + 2 * i, ST + 2 * row, bc1=True, neg1=True)
        for i in range(4):
            for row in range(2):
                x = XF + 8 * row + 2 * i; s = ST + 4 + 2 * row
                if i == 0: pk("mul", s, x, x)
                else: pk("fma", s, x, x, s)
        for row in range(2): a(f"v_add_f32 v{ST+4+2*row}, v{ST+4+2*row}, v{ST+5+2*row}")
        wave_allreduce(a, [ST + 4, ST + 6], [ST + 5, ST + 7])
        def both(fmt):
            for row in range(2): a(fmt.format(s=ST + 4 + 2 * row, m=ST + 2 * row, e=ST + 8 + 2 * row))
        def rnd(k): both(f"v_cvt_pk_bf16_f32 v{{{k}}}, v{{{k}}}, v{{{k}}}"); both(f"v_and_b32 v{{{k}}}, 0xffff0000, v{{{k}}}")
        both(f"v_mul_f32 v{{s}}, {f32(1.0/D)}, v{{s}}"); rnd("s")
        both(f"v_add_f32 v{{s}}, {f32(1e-5)}, v{{s}}"); rnd("s")
        both("v_sqrt_f32 v{s}, v{s}")
        both("v_cvt_pk_bf16_f32 v{e}, v{m}, v{m}"); rnd("s")
        both("v_rcp_f32 v{s}, v{s}")
        both("v_and_b32 v{e}, 0xffff0000, v{e}")
        both("v_sub_f32 v{e}, v{m}, v{e}")
        both("v_mul_f32 v{e}, v{e}, v{s}")
        for i in range(4):
            for row in range(2):
                x = XF + 8 * row + 2 * i
                pk("fma", x, x, ST + 4 + 2 * row, ST + 8 + 2 * row, bc1=True, bc2=True)
        for row in range(2):
            for i in range(4):
                x = XF + 8 * row + 2 * i
                a(f"v_cvt_pk_bf16_f32 v{XR+4*row+i}, v{x}, v{x+1}")
        a(f"ds_write_b128 v{vRW}, v[{XR}:{XR+3}] offset:{LNO}\nds_write_b128 v{vRW}, v[{XR+4}:{XR+7}] offset:{LNO+LNP}")
    HB = AF + 16
    def ln_w():
        a.ldrain(); a("s_barrier")
        stamp("lnbar")
        for it in range(2):
            for j in range(2):
                r = HB + 4 * it + 2 * j
                a(f"ds_read_b64_tr_b16 v[{r}:{r+1}], v{LT+j} offset:{LNO + it*128}")
        a(f"s_add_u32 s{sTAG}, s{sTAG}, 1")
    def ln_s():
        a(f"s_lshl_b32 s{sT0}, s{sR8}, 13\ns_lshl_b32 s{sT1}, s{sWAVE}, 11\ns_add_u32 s{sT0}, s{sT0}, s{sT1}")
        a.ldrain()
        for it in range(2):
            r = HB + 4 * it
            a.vmem(f"buffer_store_dwordx4 v[{r}:{r+3}], v{vA16}, s[{sH}:{sH+3}], s{sT0} offen offset:{1024*it} {SC}", "pub")
        a.vmem(f"buffer_store_dwordx4 v[{SN}:{SN+3}], v{vUA}, s[{sUst}:{sUst+3}], s{sUso} offen {SC}", "pub")
        a.vmem(f"buffer_store_dwordx4 v[{SN}:{SN+3}], v{vUB}, s[{sUst}:{sUst+3}], s{sUso} offen {SC}", "pub")
    def set_flag():
        a(f"s_lshl_b32 s{sT0}, s{sK}, 2\ns_bfe_u32 s{sT1}, s{sR8}, 0x20002\ns_add_u32 s{sT0}, s{sT0}, s{sT1}\ns_lshl_b32 s{sT0}, s{sT0}, 5")
        a(f"s_bfe_u32 s{sT1}, s{sR8}, 0x30004\ns_lshl_b32 s{sT1}, s{sT1}, 2\ns_add_u32 s{sT0}, s{sT0}, s{sT1}\ns_and_b32 s{sT1}, s{sR8}, 3\ns_add_u32 s{sT0}, s{sT0}, s{sT1}\ns_mul_i32 s{sT0}, s{sT0}, {FST}")
        a(f"s_lshl_b32 s{sFO}, s{sK}, 2\ns_add_u32 s{sFO}, s{sFO}, s{sWAVE}\ns_mul_i32 s{sFO}, s{sFO}, {FLS}")
        a(f"v_and_b32 v{vFO}, 31, v{vLANE}\nv_mul_u32_u24 v{vFO}, {FST}, v{vFO}")
        a.wait("pub")
        a("s_barrier")
        stamp("pubbar")
        a(f"s_cmp_lg_u32 s{sWAVE}, 0\ns_cbranch_scc1 L_nopub\ns_atomic_swap s{sTAG}, s[{sFL}:{sFL+1}], s{sT0}\nL_nopub:")
    def bias_loads():
        a(f"v_and_b32 v{vT1}, 15, v{vLANE}\nv_lshlrev_b32 v{vT1}, 1, v{vT1}\nv_lshl_add_u32 v{vT1}, v{vWAVE}, 5, v{vT1}\ns_lshl_b32 s{sT0}, s{sST}, 7")
        a.vmem(f"buffer_load_ushort v{vB2}, v{vT1}, s[{sB2}:{sB2+3}], s{sT0} offen", "b2")
        a(f"v_lshlrev_b32 v{vT0}, 3, v{vG}\ns_lshl_b32 s{sT0}, s{sFB0}, 5")
        for sg in range(3):
            a.vmem(f"buffer_load_dwordx2 v[{vB1+2*sg}:{vB1+2*sg+1}], v{vT0}, s[{sB1}:{sB1+3}], s{sT0} offen offset:{32*sg}", "b1")
    nchk = [0]
    def poll():
        a.vmem(f"buffer_load_dword v{vFL}, v{vFO}, s[{sFL}:{sFL+3}], s{sFO} offen {SC}", f"fl{nchk[0]}")
    def chk():
        n = nchk[0]; nchk[0] += 1
        a.wait(f"fl{n}")
        a(f"v_cmp_ne_u32 vcc, s{sTAG}, v{vFL}\ns_cbranch_vccnz L_fretry{n}\nL_fok{n}:")
        stamp(f"flagok{n}")
    def other(): a(f"s_xor_b32 s{sT0}, s{sK}, 1\ns_lshl_b32 s{sFO}, s{sT0}, 2\ns_add_u32 s{sFO}, s{sFO}, s{sWAVE}\ns_mul_i32 s{sFO}, s{sFO}, {FLS}")
    simple = dict(ln=ln, ln_w=ln_w, ln_s=ln_s, zero=zero1, flag=set_flag, bias=bias_loads, poll=poll, chk=chk, other=other, setup2=setup2, setup3=setup3)
    for tok in P["sched1"]:
        if isinstance(tok, str): simple[tok]()
        elif tok[0] == "m1": m1(tok[1], tok[2], tok[1] < P["nfull"])
        else: run(parts_of(tok))
    stamp("sendset")
    def wr(sg, tau, lab):
        c = acc1(sg, tau)
        return lambda: a.lds(f"ds_write_b128 v{vRW}, v[{c}:{c+3}] offset:{((tau-1)*6 + sg)*1024}", lab)
    assert len(deferred) >= 12
    keep = 12
    dmf(min(3, len(deferred) - keep))
    if len(deferred) == keep: a('s_nop 1')
    dmf(min(P["dmfA"], len(deferred) - P["keepA"]), [wr(sg, tau, "rw") for tau in (1, 2, 3) for sg in (3, 4, 5)])
    a.ldrain(); a("s_barrier")
    stamp("redAbar")
    for tau in range(1, 4):
        for sg in (3, 4, 5):
            c = acc1(sg, tau)
            a.lds(f"ds_read_b128 v[{c}:{c+3}], v{vRR+tau-1} offset:{((tau-1)*6 + sg)*1024}", f"ra{tau}")
    dmf(min(6, len(deferred)))
    PXS = acc1(3, 1)
    a(f"s_lshl_b32 s{sT0}, s2, 14\ns_lshl_b32 s{sT1}, s{sWAVE}, 12\ns_add_u32 s{sT0}, s{sT0}, s{sT1}\ns_xor_b32 s{sT1}, s{sT0}, {4 << 14}")
    for tau in (1, 2):
        a.lwait(f"ra{tau}")
        for sg in (3, 4, 5):
            for r in (0, 2): pk("add", acc1(sg, 0) + r, acc1(sg, 0) + r, acc1(sg, tau) + r)
        dmf(min(2, len(deferred)))
    a.lwait("ra3")
    chunk = [acc1(3, 1), acc1(3, 2), acc1(4, 1), acc1(4, 2)]
    for e in range(12):
        sg, r = 3 + e // 4, e % 4
        a(f"v_add_f32 v{chunk[e//3] + e%3}, v{acc1(sg,0)+r}, v{acc1(sg,3)+r}")
    for c in range(4): a(f"v_mov_b32 v{chunk[c]+3}, s{sTAG}")
    for c in range(4):
        a.vmem(f"buffer_store_dwordx4 v[{chunk[c]}:{chunk[c]+3}], v{vA16}, s[{sPX}:{sPX+3}], s{sT0} offen offset:{1024*c} {SC}", "pxs")
    stamp("pxsent")
    dmf(len(deferred), P["sched_d"])
    a("s_nop 7")
    stamp("mfma1done")
    for tau in (1, 2, 3):
        if tau == 2: a("s_nop 1")
        for sg in (0, 1, 2): wr(sg, tau, "rw2")()
    PXR = AF + 32
    def px_loads(track):
        for c in range(4):
            s = f"buffer_load_dwordx4 v[{PXR+4*c}:{PXR+4*c+3}], v{vA16}, s[{sPX}:{sPX+3}], s{sT1} offen offset:{1024*c} sc1"
            if track: a.vmem(s, "pxr")
            else: a(s)
    if P["pxearly"]:
        if P["pxwait"]: a.wait("pxs")
        px_loads(True)
    a.ldrain(); a("s_barrier")
    stamp("redBbar")
    for tau in range(1, 4):
        for sg in (0, 1, 2):
            c = acc1(sg, tau)
            a.lds(f"ds_read_b128 v[{c}:{c+3}], v{vRR+tau-1} offset:{((tau-1)*6 + sg)*1024}", f"rb{tau}")
    BI = AF + 48
    for i in range(6): a(f"v_lshlrev_b32 v{BI+2*i}, 16, v{vB1+i}\nv_and_b32 v{BI+2*i+1}, 0xffff0000, v{vB1+i}")
    for sg in range(3):
        for r in (0, 2): pk("add", acc1(sg, 0) + r, acc1(sg, 0) + r, BI + 4 * sg + r)
    k0 = -2.0 * math.sqrt(2.0 / math.pi) * math.log2(math.e); k1 = k0 * 0.044715
    KC = AF + 60
    a(f"v_mov_b32 v{KC}, {f32(k1)}\nv_mov_b32 v{KC+2}, {f32(k0)}\nv_mov_b32 v{KC+4}, 1.0")
    for tau in range(1, 4):
        a.lwait(f"rb{tau}")
        for sg in range(3):
            for r in (0, 2): pk("add", acc1(sg, 0) + r, acc1(sg, 0) + r, acc1(sg, tau) + r)
    if not P["pxearly"]:
        if P["pxwait"]: a.wait("pxs")
        px_loads(True)
    for tok in P["sched_px"]: run(parts_of(tok))
    a(f"s_mov_b32 s{sSPIN}, {SPINMAX}")
    a.wait("pxr")
    a("L_pxchk:")
    a(f"v_xor_b32 v{vT0}, s{sTAG}, v{PXR+3}\nv_xor_b32 v{vT1}, s{sTAG}, v{PXR+7}\nv_or_b32 v{vT0}, v{vT0}, v{vT1}")
    a(f"v_xor_b32 v{vT1}, s{sTAG}, v{PXR+11}\nv_or_b32 v{vT0}, v{vT0}, v{vT1}\nv_xor_b32 v{vT1}, s{sTAG}, v{PXR+15}\nv_or_b32 v{vT0}, v{vT0}, v{vT1}")
    a(f"v_cmp_ne_u32 vcc, 0, v{vT0}\ns_cbranch_vccnz L_pxretry\nL_pxok:")
    stamp("pxok")
    if DIAG: a(f"s_sub_u32 s3, {SPINMAX}, s{sSPIN}\nv_writelane_b32 v{vST}, s3, 62")
    G = ACC + 4
    for e in range(12):
        a(f"v_add_f32 v{G+e}, v{acc1(e//4,0) + e%4}, v{PXR + 4*(e//3) + e%3}")
    T = ACC + 20
    for i in range(0, 12, 2): pk("mul", T + i, G + i, G + i)
    for i in range(0, 12, 2): pk("fma", T + i, T + i, KC, KC + 2, bc1=True, bc2=True)
    for i in range(0, 12, 2): pk("mul", T + i, T + i, G + i)
    for i in range(12): a(f"v_exp_f32 v{T+i}, v{T+i}")
    for i in range(0, 12, 2): pk("add", T + i, T + i, KC + 4, bc1=True)
    for i in range(12): a(f"v_rcp_f32 v{T+i}, v{T+i}")
    for i in range(0, 12, 2): pk("mul", G + i, G + i, T + i)
    for i in range(6): a(f"v_cvt_pk_bf16_f32 v{T+i}, v{G+2*i}, v{G+2*i+1}")
    for i in range(6): a(f"v_min_u32 v{T+i}, -2, v{T+i}")
    a(f"v_mov_b32 v{T+6}, v{T+4}\nv_mov_b32 v{T+7}, v{T+5}\ns_nop 0")
    for p in range(2):
        for h in range(2): a(f"v_permlane16_swap_b32 v{T+4*p+h}, v{T+4*p+2+h}")
    a.vmem(f"buffer_store_dwordx4 v[{T}:{T+3}], v{vUA}, s[{sUst}:{sUst+3}], s{sUso} offen {SC}", "ust")
    a.vmem(f"buffer_store_dwordx4 v[{T+4}:{T+7}], v{vUB}, s[{sUst}:{sUst+3}], s{sUso} offen {SC}", "ust")
    stamp("ustored")
    a("s_nop 1")
    for i in range(0, 64, 2): a(f"v_mov_b64 v[{ACC+i}:{ACC+i+1}], 0")
    for tok in P["sched2"]:
        if isinstance(tok, str): simple[tok]()
        else: run(parts_of(tok))
    a(f"s_lshl_b32 s{sAbase}, s{sWAVE}, 15\ns_lshl_b32 s{sT1}, s{sDT2}, 12\ns_add_u32 s{sAbase}, s{sAbase}, s{sT1}")
    a(f"s_add_u32 s{sAend}, s{sAbase}, {11*131072}\ns_lshl_b32 s{sT1}, s{sROT}, 17\ns_add_u32 s{sUo}, s{sAbase}, s{sT1}")
    for j in range(1, 11):
        a(f"s_add_u32 s{sUo+j}, s{sUo+j-1}, 131072\ns_cmp_ge_u32 s{sUo+j}, s{sAend}\ns_cselect_b32 s{sUo+j}, s{sAbase}, s{sUo+j}")
    if P["uwait"]: a.wait("ust")
    stamp("w2done")
    PU = P["preu"]; NS2 = PU + 1; UF = 96
    assert UF + NS2 * 16 <= 240
    def u_parts(j, track=True):
        def mk(ab):
            def f():
                r = UF + (j % NS2) * 16 + ab * 4
                s = f"buffer_load_dwordx4 v[{r}:{r+3}], v{vA16}, s[{sU}:{sU+3}], s{sUo+j} offen offset:{1024*ab} sc1"
                if track: a.vmem(s, f"u{j}")
                else: a(s)
            return f
        return [mk(ab) for ab in range(4)]
    un = 0
    while un < PU: run(u_parts(un)); un += 1
    a(f"s_mov_b32 s{sSPIN}, {SPINMAX}")
    def chk_ops(j):
        b = UF + (j % NS2) * 16
        return [f"v_max3_u32 v{vT0}, v{b}, v{b+1}, v{b+2}", f"v_max3_u32 v{vT1}, v{b+3}, v{b+4}, v{b+5}",
                f"v_max3_u32 v{vT0}, v{vT0}, v{b+6}, v{b+7}", f"v_max3_u32 v{vT1}, v{vT1}, v{b+8}, v{b+9}",
                f"v_max3_u32 v{vT0}, v{vT0}, v{b+10}, v{b+11}", f"v_max3_u32 v{vT1}, v{vT1}, v{b+12}, v{b+13}",
                f"v_max3_u32 v{vT0}, v{vT0}, v{b+14}, v{b+15}", f"v_max_u32 v{vT0}, v{vT0}, v{vT1}",
                f"v_cmp_eq_u32 vcc, -1, v{vT0}"]
    a.wait("u0")
    for s in chk_ops(0): a(s)
    a.ldrain()
    for j in range(11):
        a(f"s_cbranch_vccnz L_uretry{j}\nL_uok{j}:")
        if j % 2 == 0: stamp(f"u{j}")
        b = UF + (j % NS2) * 16
        parts = []
        if un < 11: parts = u_parts(un); un += 1
        order = (1, 2, 3, 0) if j == 10 else (0, 1, 2, 3)
        ck = chk_ops(j + 1) if j < 10 else []
        n = 0
        for k, t in enumerate(order):
            for ab in range(4):
                c = ACC + (t * 4 + ab) * 4; w = w2base(j) + 4 * t; x = b + ab * 4
                a(f"v_mfma_f32_16x16x32_bf16 v[{c}:{c+3}], v[{x}:{x+3}], a[{w}:{w+3}], v[{c}:{c+3}]")
                n += 1
                if ab == 0 and k < len(parts): parts[k]()
                if ck and n >= 16 - P["chkpos"]:
                    if len(ck) == 9: a.wait(f"u{j+1}")
                    for _ in range(P["chkper"]):
                        if ck: a(ck.pop(0))
                if j == 10 and n > 8:
                    i = n - 9; c2 = ACC + (order[i // 4] * 4 + i % 4) * 4
                    a(f"ds_write_b128 v{vRW}, v[{c2}:{c2+3}] offset:{W2R + i*1024}")
        for s in ck: a(s)
    stamp("mfma2done")
    for i in range(8, 12):
        c2 = ACC + (3 * 4 + i % 4) * 4
        a(f"ds_write_b128 v{vRW}, v[{c2}:{c2+3}] offset:{W2R + i*1024}")
    E = 224
    a(f"v_lshlrev_b32 v{vB2}, 16, v{vB2}")
    a(f"v_and_b32 v{E}, 1, v{vG}\nv_lshrrev_b32 v{E+1}, 1, v{vG}\nv_and_b32 v{E+2}, 15, v{vLANE}")
    a(f"v_lshlrev_b32 v{vT0}, 10, v{E+2}\nv_lshl_add_u32 v{vT0}, v{E}, 5, v{vT0}\nv_lshl_add_u32 v{vT0}, v{E+1}, 4, v{vT0}")
    a(f"s_lshl_b32 s{sT0}, s{sST}, 16\ns_lshl_b32 s3, s{sWAVE}, 14\ns_add_u32 s{sT0}, s{sT0}, s3\ns_lshl_b32 s3, s{sDT2}, 7\ns_add_u32 s{sT0}, s{sT0}, s3")
    for i in range(0, 16, 2): pk("add", ACC + i, ACC + i, vB2, bc1=True)
    a("s_waitcnt lgkmcnt(0)\ns_barrier")
    stamp("red2bar")
    for half in range(2):
        for tau in range(1, 4):
            for ab in (2 * half, 2 * half + 1):
                c = ACC + (tau * 4 + ab) * 4
                a(f"ds_read_b128 v[{c}:{c+3}], v{vRR+tau-1} offset:{W2R + ((tau-1)*4 + ab)*1024}")
    T = E + 4
    ofl = P.get("outflags", "")
    for half in range(2):
        for tau in range(1, 4):
            a(f"s_waitcnt lgkmcnt({12 - 6*half - 2*tau})")
            for i in range(8 * half, 8 * half + 8, 2): pk("add", ACC + i, ACC + i, ACC + tau * 16 + i)
        for i in range(4): a(f"v_cvt_pk_bf16_f32 v{T+4*half+i}, v{ACC+8*half+2*i}, v{ACC+8*half+2*i+1}")
        a("s_nop 1")
        for h in range(2): a(f"v_permlane16_swap_b32 v{T+4*half+h}, v{T+4*half+2+h}")
        a(f"buffer_store_dwordx4 v[{T+4*half}:{T+4*half+3}], v{vT0}, s[{sOUT}:{sOUT+3}], s{sT0} offen offset:{64*half} {ofl}")
    a(f"s_or_b32 s3, s2, s{sWAVE}\ns_cmp_lg_u32 s3, 0\ns_cbranch_scc1 L_nobump")
    a(f"s_mov_b32 s{sT1}, {EP_OFF}\ns_atomic_swap s{sTAG}, s[18:19], s{sT1}")
    a("L_nobump:")
    if DIAG:
        stamp("stissued")
        a("s_waitcnt vmcnt(0)")
        stamp("end", True)
        a(f"s_sub_u32 s4, {SPINMAX}, s{sSPIN}\nv_writelane_b32 v{vST}, s4, 63")
        srd(a, 56, 18, 4 << 20, STAMP_OFF)
        a(f"v_lshlrev_b32 v1, 2, v0\ns_lshl_b32 s3, s2, 10")
        a(f"buffer_store_dword v{vST}, v1, s[56:59], s3 offen")
    a("L_end:\ns_endpgm")
    for n in range(nchk[0]):
        a(f"L_fretry{n}:\ns_mov_b32 s{sSPIN}, {SPINMAX}\nL_fr{n}:")
        a(f"s_sleep {P['fsleep']}\nbuffer_load_dword v{vFL}, v{vFO}, s[{sFL}:{sFL+3}], s{sFO} offen {SC}\ns_waitcnt vmcnt(0)")
        a(f"v_cmp_ne_u32 vcc, s{sTAG}, v{vFL}\ns_cbranch_vccz L_fok{n}")
        a(f"s_cmp_eq_u32 s{sSPIN}, 0\ns_cbranch_scc1 L_fok{n}\ns_sub_u32 s{sSPIN}, s{sSPIN}, 1\ns_branch L_fr{n}")
    a("L_pxretry:")
    a(f"s_cmp_eq_u32 s{sSPIN}, 0\ns_cbranch_scc1 L_pxok\ns_sub_u32 s{sSPIN}, s{sSPIN}, 1")
    px_loads(False)
    a("s_waitcnt vmcnt(0)\ns_branch L_pxchk")
    for j in range(11):
        a(f"L_uretry{j}:")
        a(f"s_cmp_eq_u32 s{sSPIN}, 0\ns_cbranch_scc1 L_uok{j}\ns_sub_u32 s{sSPIN}, s{sSPIN}, 1")
        run(u_parts(j, track=False))
        a("s_waitcnt vmcnt(0)")
        for s in chk_ops(j): a(s)
        a(f"s_cbranch_vccnz L_uretry{j}\ns_branch L_uok{j}")
    a("L_code_end:")
    hdr = open("standalone__mixer_token_mlp__prompt.s.ref").read().split("; Override")[0]
    if DIAG: hdr += "; STAMPS " + " ".join(names) + "\n"
    hdr += f"; @launch grid=(256,1,1) block=(256,1,1) lds={LDS}\n"
    d = f""".section .rodata,"a"
.p2align 6
.amdhsa_kernel {NAME}
  .amdhsa_next_free_vgpr 512
  .amdhsa_next_free_sgpr 102
  .amdhsa_accum_offset 256
  .amdhsa_group_segment_fixed_size 0
  .amdhsa_kernarg_size 64
  .amdhsa_user_sgpr_count 2
  .amdhsa_user_sgpr_kernarg_segment_ptr 1
  .amdhsa_system_sgpr_workgroup_id_x 1
.end_amdhsa_kernel
"""
    return hdr + '.amdgcn_target "amdgcn-amd-amdhsa--gfx950"\n.text\n' + a.text() + d

w1 = lambda j: ("w1", j); cw1 = lambda j: ("cw1", j); h = lambda j: ("h", j); w2 = lambda j: ("w2", j); cw2 = lambda j: ("cw2", j)
SCHED_A = ["setup2", "setup3", "zero", "ln", w1(1), "ln_w", w1(2), "ln_s", w1(3), cw1(0), cw1(1), "flag", w1(4), cw1(2), "bias", w1(5), cw1(3), "poll", w1(6), cw1(4),
           "chk", h(0), h(1), cw1(5), w1(7), h(2),
           ("m1", 0, [h(3), cw1(6)]), ("m1", 1, [h(4), cw1(7)]), ("m1", 2, [h(5)]), ("m1", 3, [h(6)]), ("m1", 4, [h(7)]), ("m1", 5, [w2(0)]),
           ("m1", 6, [w2(1)]), ("m1", 7, [])]
SCHED_B = ["setup2", "setup3", "zero", "ln", w1(1), "ln_w", "ln_s", w1(2), cw1(0), "flag", w1(3), cw1(1), "bias", w1(4), cw1(2), "poll", w1(5), cw1(3),
           "chk", h(0), h(1), cw1(4), w1(6), h(2),
           ("m1", 0, [h(3), cw1(5), w1(7)]), ("m1", 1, [h(4), cw1(6)]), ("m1", 2, [h(5), cw1(7)]), ("m1", 3, [h(6)]), ("m1", 4, [h(7)]), ("m1", 5, [w2(0)]),
           ("m1", 6, [w2(1)]), ("m1", 7, [])]
DEF = dict(diag=False, fsleep=4, fstride=64, xbar=False, pre0=1, preu=4, rotf=2, rot2=(1, 4), map2=1, chkpos=6, chkper=2, pxwait=True, pxearly=True, uwait=True,
           nfull=5, dmfA=18, keepA=10, sched1=SCHED_A,
           sched_d=[],
           sched_px=[cw2(0), cw2(1)],
           sched2=["other", "poll", w2(2), w2(3), w2(4), cw2(2), w2(5), cw2(3), w2(6), "chk", cw2(4), w2(7), cw2(5), w2(8), cw2(6), w2(9), cw2(7), w2(10), cw2(8), cw2(9), cw2(10)])
if __name__ == "__main__":
    P = dict(DEF)
    for arg in sys.argv[2:]:
        k, v = arg.split("=", 1)
        P[k] = eval(v)
    open(sys.argv[1], "w").write(gen(P))
```
